```python
import torch

def _softmax(x, axis=-1):
    return torch.softmax(x, dim=axis)
def _gelu(x):
    return torch.nn.functional.gelu(x, approximate="tanh")
def _silu(x):
    return torch.nn.functional.silu(x)
def _sigmoid(x):
    return torch.sigmoid(x)
def _layernorm(x, axis=-1, eps=1e-5):
    m = x.mean(dim=axis, keepdim=True)
    v = x.var(dim=axis, keepdim=True, unbiased=False)
    return (x - m) / torch.sqrt(v + eps)
def _scatter_add(tgt, idx, src, axis=0):
    return tgt.clone().index_add_(axis, idx, src)
def _segment_sum(src, seg, n):
    out = torch.zeros((n,) + src.shape[1:], dtype=src.dtype)
    return out.index_add_(0, seg, src)
def _pad(x, pw):
    flat = tuple(v for pair in reversed(pw) for v in pair)
    return torch.nn.functional.pad(x, flat)

kernel_name = 'standalone__low_rank_proj_linformer__sampling'

def setup_inputs():

    _w = (lambda a: (lambda t: t.to(torch.bfloat16) if t.is_floating_point() else t)(torch.as_tensor(a)))
    B, H, Sq, Skv, Dh, R = 16, 32, 16, 4096, 128, 16
    return {
        "q": _w((lambda *s: torch.randn(*s, dtype=torch.bfloat16) * 0.8)(B, H, Sq, Dh)),
        "k": _w((lambda *s: torch.randn(*s, dtype=torch.bfloat16) * 0.8)(B, H, Skv, Dh)),
        "v": _w((lambda *s: torch.randn(*s, dtype=torch.bfloat16) * 0.05)(B, H, Skv, Dh)),
        "e_proj": _w((lambda *s: torch.randn(*s, dtype=torch.bfloat16) * 0.8)(R, Skv) * (Skv ** -0.5)),
        "f_proj": _w((lambda *s: torch.randn(*s, dtype=torch.bfloat16) * 0.05)(R, Skv) * (Skv ** -0.5)),
    }

def reference(q, k, v, e_proj, f_proj):
    B, H, Sq, Dh = q.shape
    kp = torch.einsum("rn,bhnd->bhrd", e_proj, k)
    vp = torch.einsum("rn,bhnd->bhrd", f_proj, v)
    scores = torch.einsum("bhqd,bhrd->bhqr", q, kp) * (Dh ** -0.5)
    p = _softmax(scores, axis=-1)
    o = torch.einsum("bhqr,bhrd->bhqd", p, vp)
    return o
```

```python
class Asm:
    def __init__(self):
        self.lines = []
    def __call__(self, s=""):
        for l in s.split("\n"):
            self.lines.append(l)
    def label(self, name):
        self.lines.append(name + ":")
    def text(self):
        return "\n".join(self.lines) + "\n"

def vr(base, n=1):
    return f"v{base}" if n == 1 else f"v[{base}:{base+n-1}]"
def ar(base, n=1):
    return f"a{base}" if n == 1 else f"a[{base}:{base+n-1}]"
def sr(base, n=1):
    return f"s{base}" if n == 1 else f"s[{base}:{base+n-1}]"

HEADER_COMMENT = """; Kernarg layout for this problem (64 bytes, ptrs only, base s[0:1]):
"""

KNAME = "standalone__low_rank_proj_linformer__sampling_kernel"

def wrap(body, grid, block, lds, nvgpr, accum_offset, nsgpr=102, kname=KNAME):
    s = HEADER_COMMENT
    s += f"; @launch grid=({grid},1,1) block=({block},1,1) lds={lds}\n"
    s += '.amdgcn_target "amdgcn-amd-amdhsa--gfx950"\n.text\n'
    s += f".globl {kname}\n.p2align 8\n.type {kname},@function\n{kname}:\n"
    s += body
    s += f"""
.section .rodata,"a"
.p2align 6
.amdhsa_kernel {kname}
  .amdhsa_next_free_vgpr {nvgpr}
  .amdhsa_next_free_sgpr {nsgpr}
  .amdhsa_accum_offset {accum_offset}
  .amdhsa_group_segment_fixed_size 0
  .amdhsa_kernarg_size 64
  .amdhsa_user_sgpr_count 2
  .amdhsa_user_sgpr_kernarg_segment_ptr 1
  .amdhsa_system_sgpr_workgroup_id_x 1
  .amdhsa_float_denorm_mode_32 3
.end_amdhsa_kernel
"""
    return s
```

```python
import sys
from asmlib import *

def gen(D=4, flags="nt", eflags="", lds=81920, stagger=0, hpw=1, stamp=False):
    a = Asm()
    nwg = 512 // hpw
    steps = 128
    assert steps % D == 0
    VOFFK, VOFFE, VOFFQ = 1, 2, 3
    TMP = 4
    ACC = 12
    QF = 44
    PP = 60
    KB = 64
    EB = KB + 32 * D
    nv = EB + 4 * D
    assert nv <= 256
    accum = (nv + 3) // 4 * 4
    eb = lambda i: vr(EB + 4 * i, 4)
    SK, SV, SE, SF = 4, 8, 12, 16
    SP, SPE = 20, 24
    sOffK, sOffE, sCnt, sSelLo, sSelHi = 28, 29, 30, 31, 32
    sWave, sHead, sT0, sT1 = 33, 35, 36, 37
    sStart = 40
    SQ, SO = 60, 64
    a(f"s_cmp_ge_u32 s2, {nwg}")
    a("s_cbranch_scc1 L_end")
    if stamp:
        a(f"s_memrealtime s[{sStart}:{sStart+1}]")
    a("s_load_dwordx4 s[44:47], s[0:1], 0")
    a("s_load_dwordx4 s[48:51], s[0:1], 16")
    a("s_load_dwordx4 s[52:55], s[0:1], 32")
    if stamp:
        a("s_load_dwordx2 s[56:57], s[0:1], 56")
    if hpw > 1:
        a("v_lshrrev_b32 v3, 6, v0")
        a("v_and_b32 v0, 63, v0")
        a(f"v_readfirstlane_b32 s{sWave}, v3")
    a("v_and_b32 v4, 15, v0")
    a("v_lshrrev_b32 v5, 4, v0")
    a(f"v_lshlrev_b32 v{VOFFK}, 11, v5")
    a(f"v_lshl_add_u32 v{VOFFK}, v4, 4, v{VOFFK}")
    a(f"v_lshlrev_b32 v{VOFFE}, 13, v4")
    a(f"v_lshl_add_u32 v{VOFFE}, v5, 4, v{VOFFE}")
    a(f"v_lshlrev_b32 v{VOFFQ}, 8, v4")
    a(f"v_lshl_add_u32 v{VOFFQ}, v5, 6, v{VOFFQ}")
    if hpw > 1:
        a(f"s_mul_i32 s{sHead}, s2, {hpw}")
        a(f"s_add_u32 s{sHead}, s{sHead}, s{sWave}")
    else:
        a(f"s_mov_b32 s{sHead}, s2")
    a("s_waitcnt lgkmcnt(0)")
    a(f"s_lshl_b32 s{sT0}, s{sHead}, 20")
    for (S, p) in ((SK, 46), (SV, 48)):
        a(f"s_add_u32 s{S}, s{p}, s{sT0}")
        a(f"s_addc_u32 s{S+1}, s{p+1}, 0")
        a(f"s_and_b32 s{S+1}, s{S+1}, 0xffff")
        a(f"s_mov_b32 s{S+2}, 0x100000")
        a(f"s_mov_b32 s{S+3}, 0x20000")
    for (S, p) in ((SE, 50), (SF, 52)):
        a(f"s_mov_b32 s{S}, s{p}")
        a(f"s_and_b32 s{S+1}, s{p+1}, 0xffff")
        a(f"s_mov_b32 s{S+2}, 0x20000")
        a(f"s_mov_b32 s{S+3}, 0x20000")
    a(f"s_lshl_b32 s{sT0}, s{sHead}, 12")
    for (S, p) in ((SQ, 44), (SO, 54)):
        a(f"s_add_u32 s{S}, s{p}, s{sT0}")
        a(f"s_addc_u32 s{S+1}, s{p+1}, 0")
        a(f"s_and_b32 s{S+1}, s{S+1}, 0xffff")
        a(f"s_mov_b32 s{S+2}, 0x1000")
        a(f"s_mov_b32 s{S+3}, 0x20000")
    a(f"s_mov_b32 s{sSelLo}, 0x05040100")
    a(f"s_mov_b32 s{sSelHi}, 0x07060302")
    if stagger:
        a(f"s_mul_i32 s{sT0}, s{sHead}, {stagger}")
        a(f"s_and_b32 s{sT0}, s{sT0}, 127")
        a(f"s_lshl_b32 s{sOffK}, s{sT0}, 13")
        a(f"s_lshl_b32 s{sOffE}, s{sT0}, 6")
    else:
        a(f"s_mov_b32 s{sOffK}, 0")
        a(f"s_mov_b32 s{sOffE}, 0")
    for i in range(4):
        a(f"s_mov_b32 s{SP+i}, s{SK+i}")
        a(f"s_mov_b32 s{SPE+i}, s{SE+i}")

    def issue(b):
        a(f"buffer_load_dwordx4 {eb(b)}, v{VOFFE}, s[{SPE}:{SPE+3}], s{sOffE} offen {eflags}")
        for i in range(8):
            a(f"buffer_load_dwordx4 {vr(KB+32*b+4*i,4)}, v{VOFFK}, s[{SP}:{SP+3}], s{sOffK} offen offset:{i*256} {flags}")
        a(f"s_add_u32 s{sOffK}, s{sOffK}, 8192")
        a(f"s_and_b32 s{sOffK}, s{sOffK}, 0xfffff")
        a(f"s_add_u32 s{sOffE}, s{sOffE}, 64")
        a(f"s_and_b32 s{sOffE}, s{sOffE}, 0x1fff")

    def consume(b, isV):
        def perms(j):
            t = TMP + 4 * (j & 1)
            p = j >> 1
            sel = sSelHi if (j & 1) else sSelLo
            for vv in range(4):
                r0 = KB + 32 * b + 4 * (2 * vv) + p
                r1 = KB + 32 * b + 4 * (2 * vv + 1) + p
                a(f"v_perm_b32 v{t+vv}, v{r1}, v{r0}, s{sel}")
        def mf(j):
            t = TMP + 4 * (j & 1)
            if isV:
                a(f"v_mfma_f32_16x16x32_bf16 {vr(ACC+4*j,4)}, {eb(b)}, {vr(t,4)}, {vr(ACC+4*j,4)}")
            else:
                a(f"v_mfma_f32_16x16x32_bf16 {vr(ACC+4*j,4)}, {vr(t,4)}, {eb(b)}, {vr(ACC+4*j,4)}")
        perms(0)
        for j in range(8):
            if j + 1 < 8:
                perms(j + 1)
            else:
                a("s_nop 1")
            mf(j)

    for b in range(D):
        issue(b)
        if b == 0:
            for t in range(4):
                a(f"buffer_load_dwordx4 {vr(QF+4*t,4)}, v{VOFFQ}, s[{SQ}:{SQ+3}], 0 offen offset:{t*16}")
    for i in range(32):
        a(f"v_mov_b32 v{ACC+i}, 0")
    first = True
    for ph in range(2):
        last = ph == 1
        a(f"s_mov_b32 s{sCnt}, {steps // D}")
        a.label(f"L_loop{ph}")
        a(f"s_cmp_eq_u32 s{sCnt}, 1")
        a(f"s_cbranch_scc0 L_nosw{ph}")
        if last:
            a(f"s_mov_b32 s{SP+2}, 0")
            a(f"s_mov_b32 s{SPE+2}, 0")
        else:
            for i in range(3):
                a(f"s_mov_b32 s{SP+i}, s{SV+i}")
                a(f"s_mov_b32 s{SPE+i}, s{SF+i}")
        a.label(f"L_nosw{ph}")
        for b in range(D):
            a(f"s_waitcnt vmcnt({(D-1)*9})")
            consume(b, ph == 1)
            issue(b)
        a(f"s_sub_u32 s{sCnt}, s{sCnt}, 1")
        a(f"s_cmp_lg_u32 s{sCnt}, 0")
        a(f"s_cbranch_scc1 L_loop{ph}")
        if ph == 0:
            KP = TMP
            S = 56
            a("s_nop 7")
            SC = 60
            for t in range(4):
                tt = TMP + 4 * (t & 1)
                for vv in range(4):
                    a(f"v_cvt_pk_bf16_f32 v{tt+vv}, v{ACC+4*(2*vv)+t}, v{ACC+4*(2*vv+1)+t}")
                a("s_nop 1")
                c = "0" if t == 0 else vr(SC, 4)
                a(f"v_mfma_f32_16x16x32_bf16 {vr(SC,4)}, {vr(tt,4)}, {vr(QF+4*t,4)}, {c}")
            for i in range(32):
                a(f"v_mov_b32 v{ACC+i}, 0")
            a(f"v_cvt_pk_bf16_f32 v4, v{SC}, v{SC+1}")
            a(f"v_cvt_pk_bf16_f32 v5, v{SC+2}, v{SC+3}")
            a(f"v_lshlrev_b32 v6, 16, v4")
            a(f"v_and_b32 v7, 0xffff0000, v4")
            a(f"v_lshlrev_b32 v8, 16, v5")
            a(f"v_and_b32 v9, 0xffff0000, v5")
            a(f"s_mov_b32 s{sT0}, 0x3db504f3")
            for i in range(4):
                a(f"v_mul_f32 v{6+i}, s{sT0}, v{6+i}")
            a(f"v_cvt_pk_bf16_f32 v4, v6, v7")
            a(f"v_cvt_pk_bf16_f32 v5, v8, v9")
            a(f"v_lshlrev_b32 v6, 16, v4")
            a(f"v_and_b32 v7, 0xffff0000, v4")
            a(f"v_lshlrev_b32 v8, 16, v5")
            a(f"v_and_b32 v9, 0xffff0000, v5")
            a("v_max_f32 v4, v6, v7")
            a("v_max3_f32 v4, v4, v8, v9")
            def xreduce(op):
                a("v_mov_b32 v5, v4")
                a("s_nop 1")
                a("v_permlane32_swap_b32 v4, v5")
                a("s_nop 1")
                a(f"{op} v4, v4, v5")
                a("v_mov_b32 v5, v4")
                a("s_nop 1")
                a("v_permlane16_swap_b32 v4, v5")
                a("s_nop 1")
                a(f"{op} v4, v4, v5")
            xreduce("v_max_f32")
            a(f"s_mov_b32 s{sT0}, 0x3fb8aa3b")
            for i in range(4):
                a(f"v_sub_f32 v{6+i}, v{6+i}, v4")
            for i in range(4):
                a(f"v_mul_f32 v{6+i}, s{sT0}, v{6+i}")
            for i in range(4):
                a(f"v_exp_f32 v{6+i}, v{6+i}")
            a("s_nop 0")
            a("v_add_f32 v4, v6, v7")
            a("v_add_f32 v5, v8, v9")
            a("v_add_f32 v4, v4, v5")
            xreduce("v_add_f32")
            a("v_rcp_f32 v4, v4")
            a("s_nop 0")
            for i in range(4):
                a(f"v_mul_f32 v{6+i}, v4, v{6+i}")
            a(f"v_cvt_pk_bf16_f32 v{PP}, v6, v7")
            a(f"v_cvt_pk_bf16_f32 v{PP+1}, v8, v9")
    a("s_nop 7")
    O = KB
    a("s_waitcnt vmcnt(0)")
    for j in range(8):
        tt = TMP + 2 * (j & 3)
        a(f"v_cvt_pk_bf16_f32 v{tt}, v{ACC+4*j}, v{ACC+4*j+1}")
        a(f"v_cvt_pk_bf16_f32 v{tt+1}, v{ACC+4*j+2}, v{ACC+4*j+3}")
        a("s_nop 1")
        a(f"v_mfma_f32_16x16x16_bf16 {vr(O+4*j,4)}, {vr(PP,2)}, {vr(tt,2)}, 0")
    a("s_nop 7")
    a("v_lshrrev_b32 v5, 4, v0")
    a("v_and_b32 v4, 15, v0")
    a("v_lshlrev_b32 v3, 10, v5")
    a("v_lshl_add_u32 v3, v4, 4, v3")
    for t in range(4):
        for vv in range(4):
            a(f"v_cvt_pk_bf16_f32 v{ACC+4*t+vv}, v{O+4*(2*vv)+t}, v{O+4*(2*vv+1)+t}")
        a(f"buffer_store_dwordx4 {vr(ACC+4*t,4)}, v3, s[{SO}:{SO+3}], 0 offen offset:{t*256}")
    if stamp:
        a(f"s_mov_b32 s68, s56")
        a(f"s_and_b32 s69, s57, 0xffff")
        a(f"s_mov_b32 s70, 0x10000000")
        a(f"s_mov_b32 s71, 0x20000")
        a("s_waitcnt vmcnt(0)")
        a("s_memrealtime s[42:43]")
        a(f"s_getreg_b32 s72, hwreg(HW_REG_XCC_ID)")
        a(f"s_getreg_b32 s73, hwreg(HW_REG_HW_ID)")
        a("s_waitcnt lgkmcnt(0)")
        a(f"v_mov_b32 v4, s{sStart}")
        a(f"v_mov_b32 v5, s{sStart+1}")
        a(f"v_mov_b32 v6, s42")
        a(f"v_mov_b32 v7, s43")
        a(f"v_mov_b32 v8, s72")
        a(f"v_mov_b32 v9, s73")
        a(f"v_mov_b32 v10, 0")
        a(f"v_mov_b32 v11, 0")
        a(f"s_lshl_b32 s{sT1}, s{sHead}, 5")
        a(f"v_mov_b32 v3, 0")
        a("v_cmp_eq_u32 vcc, 0, v0")
        a("s_and_saveexec_b64 s[74:75], vcc")
        a(f"buffer_store_dwordx4 v[4:7], v3, s[68:71], s{sT1} offen")
        a(f"buffer_store_dwordx4 v[8:11], v3, s[68:71], s{sT1} offen offset:16")
        a("s_mov_b64 exec, s[74:75]")
    a.label("L_end")
    a("s_endpgm")
    return wrap(a.text(), nwg, hpw * 64, lds, nv, accum), dict(nwaves=512, nv=nv)

if __name__ == "__main__":
    import json
    kw = json.loads(sys.argv[1]) if len(sys.argv) > 1 else {}
    s, info = gen(**kw)
    print(s)
```

```python
import sys
from asmlib import *

def gen(D=4, flags="nt", eflags="", lds=81920, stagger=0, hpw=1, stamp=False, W=0, X=-1, oflags=""):
    a = Asm()
    nwg = 512 // hpw
    steps = 128
    assert steps % D == 0
    VOFFK, VOFFE, VOFFQ = 1, 2, 3
    TMP = 4
    ACC = 12
    QF = 44
    PP = 60
    KB = 68
    EB = KB + 32 * D
    nv = EB + 4 * D
    assert nv <= 256
    accum = (nv + 3) // 4 * 4
    eb = lambda i: vr(EB + 4 * i, 4)
    SK, SV, SE, SF = 4, 8, 12, 16
    SP, SPE = 20, 24
    sOffK, sOffE, sCnt, sSelLo, sSelHi = 28, 29, 30, 31, 32
    sWave, sHead, sT0, sT1 = 33, 35, 36, 37
    sStart = 40
    SQ, SO = 60, 64
    a(f"s_cmp_ge_u32 s2, {nwg}")
    a("s_cbranch_scc1 L_end")
    if stamp:
        a(f"s_memrealtime s[{sStart}:{sStart+1}]")
    a("s_load_dwordx4 s[44:47], s[0:1], 0")
    a("s_load_dwordx4 s[48:51], s[0:1], 16")
    a("s_load_dwordx4 s[52:55], s[0:1], 32")
    if stamp:
        a("s_load_dwordx2 s[56:57], s[0:1], 56")
    if hpw > 1:
        a("v_lshrrev_b32 v3, 6, v0")
        a("v_and_b32 v0, 63, v0")
        a(f"v_readfirstlane_b32 s{sWave}, v3")
    a("v_and_b32 v4, 15, v0")
    a("v_lshrrev_b32 v5, 4, v0")
    a(f"v_lshlrev_b32 v{VOFFK}, 11, v5")
    a(f"v_lshl_add_u32 v{VOFFK}, v4, 4, v{VOFFK}")
    a(f"v_lshlrev_b32 v{VOFFE}, 13, v4")
    a(f"v_lshl_add_u32 v{VOFFE}, v5, 4, v{VOFFE}")
    a(f"v_lshlrev_b32 v{VOFFQ}, 8, v4")
    a(f"v_lshl_add_u32 v{VOFFQ}, v5, 6, v{VOFFQ}")
    if hpw > 1:
        a(f"s_mul_i32 s{sHead}, s2, {hpw}")
        a(f"s_add_u32 s{sHead}, s{sHead}, s{sWave}")
    else:
        a(f"s_mov_b32 s{sHead}, s2")
    a("s_waitcnt lgkmcnt(0)")
    a(f"s_lshl_b32 s{sT0}, s{sHead}, 20")
    for (S, p) in ((SK, 46), (SV, 48)):
        a(f"s_add_u32 s{S}, s{p}, s{sT0}")
        a(f"s_addc_u32 s{S+1}, s{p+1}, 0")
        a(f"s_and_b32 s{S+1}, s{S+1}, 0xffff")
        a(f"s_mov_b32 s{S+2}, 0x100000")
        a(f"s_mov_b32 s{S+3}, 0x20000")
    for (S, p) in ((SE, 50), (SF, 52)):
        a(f"s_mov_b32 s{S}, s{p}")
        a(f"s_and_b32 s{S+1}, s{p+1}, 0xffff")
        a(f"s_mov_b32 s{S+2}, 0x20000")
        a(f"s_mov_b32 s{S+3}, 0x20000")
    a(f"s_lshl_b32 s{sT0}, s{sHead}, 12")
    for (S, p) in ((SQ, 44), (SO, 54)):
        a(f"s_add_u32 s{S}, s{p}, s{sT0}")
        a(f"s_addc_u32 s{S+1}, s{p+1}, 0")
        a(f"s_and_b32 s{S+1}, s{S+1}, 0xffff")
        a(f"s_mov_b32 s{S+2}, 0x1000")
        a(f"s_mov_b32 s{S+3}, 0x20000")
    a(f"s_mov_b32 s{sSelLo}, 0x05040100")
    a(f"s_mov_b32 s{sSelHi}, 0x07060302")
    if stagger:
        a(f"s_mul_i32 s{sT0}, s{sHead}, {stagger}")
        a(f"s_and_b32 s{sT0}, s{sT0}, 127")
        a(f"s_lshl_b32 s{sOffK}, s{sT0}, 13")
        a(f"s_lshl_b32 s{sOffE}, s{sT0}, 6")
    else:
        a(f"s_mov_b32 s{sOffK}, 0")
        a(f"s_mov_b32 s{sOffE}, 0")
    for i in range(4):
        a(f"s_mov_b32 s{SP+i}, s{SK+i}")
        a(f"s_mov_b32 s{SPE+i}, s{SE+i}")

    def issue(b, gate=True):
        if gate and X >= 0:
            a(f"s_waitcnt vmcnt({X})")
        if gate and W:
            a(f"s_waitcnt vmcnt({W-1})")
        a(f"buffer_load_dwordx4 {eb(b)}, v{VOFFE}, s[{SPE}:{SPE+3}], s{sOffE} offen {eflags}")
        for i in range(8):
            if gate and W:
                a(f"s_waitcnt vmcnt({W-1})")
            a(f"buffer_load_dwordx4 {vr(KB+32*b+4*i,4)}, v{VOFFK}, s[{SP}:{SP+3}], s{sOffK} offen offset:{i*256} {flags}")
        a(f"s_add_u32 s{sOffK}, s{sOffK}, 8192")
        a(f"s_and_b32 s{sOffK}, s{sOffK}, 0xfffff")
        a(f"s_add_u32 s{sOffE}, s{sOffE}, 64")
        a(f"s_and_b32 s{sOffE}, s{sOffE}, 0x1fff")

    def consume(b, isV):
        def perms(j):
            t = TMP + 4 * (j & 1)
            p = j >> 1
            sel = sSelHi if (j & 1) else sSelLo
            for vv in range(4):
                r0 = KB + 32 * b + 4 * (2 * vv) + p
                r1 = KB + 32 * b + 4 * (2 * vv + 1) + p
                a(f"v_perm_b32 v{t+vv}, v{r1}, v{r0}, s{sel}")
        def mf(j):
            t = TMP + 4 * (j & 1)
            if isV:
                a(f"v_mfma_f32_16x16x32_bf16 {vr(ACC+4*j,4)}, {eb(b)}, {vr(t,4)}, {vr(ACC+4*j,4)}")
            else:
                a(f"v_mfma_f32_16x16x32_bf16 {vr(ACC+4*j,4)}, {vr(t,4)}, {eb(b)}, {vr(ACC+4*j,4)}")
        perms(0)
        for j in range(8):
            if j + 1 < 8:
                perms(j + 1)
            else:
                a("s_nop 1")
            mf(j)

    for b in range(D):
        issue(b)
        if b == 0:
            for t in range(4):
                a(f"buffer_load_dwordx4 {vr(QF+4*t,4)}, v{VOFFQ}, s[{SQ}:{SQ+3}], 0 offen offset:{t*16}")
    for i in range(32):
        a(f"v_mov_b32 v{ACC+i}, 0")
    if stamp == 2:
        a("s_mov_b32 s76, 0")
        a("v_mov_b32 v62, 0")
    for ph in range(2):
        last = ph == 1
        a(f"s_mov_b32 s{sCnt}, {steps // D}")
        a.label(f"L_loop{ph}")
        a(f"s_cmp_eq_u32 s{sCnt}, 1")
        a(f"s_cbranch_scc0 L_nosw{ph}")
        if last:
            a(f"s_mov_b32 s{SP+2}, 0")
            a(f"s_mov_b32 s{SPE+2}, 0")
        else:
            for i in range(3):
                a(f"s_mov_b32 s{SP+i}, s{SV+i}")
                a(f"s_mov_b32 s{SPE+i}, s{SF+i}")
        a.label(f"L_nosw{ph}")
        for b in range(D):
            a(f"s_waitcnt vmcnt({(D-1)*9})")
            if stamp == 2 and b == 0:
                a("s_memrealtime s[42:43]")
            consume(b, ph == 1)
            issue(b)
            if stamp == 2 and b == 0:
                a("s_waitcnt lgkmcnt(0)")
                a(f"s_lshr_b32 m0, s76, {(4 // D).bit_length() - 1}")
                a(f"s_add_u32 s76, s76, 1")
                a("v_writelane_b32 v62, s42, m0")
        a(f"s_sub_u32 s{sCnt}, s{sCnt}, 1")
        a(f"s_cmp_lg_u32 s{sCnt}, 0")
        a(f"s_cbranch_scc1 L_loop{ph}")
        if ph == 0:
            KP = TMP
            S = 56
            a("s_nop 7")
            SC = 64
            for t in range(4):
                tt = TMP + 4 * (t & 1)
                for vv in range(4):
                    a(f"v_cvt_pk_bf16_f32 v{tt+vv}, v{ACC+4*(2*vv)+t}, v{ACC+4*(2*vv+1)+t}")
                a("s_nop 1")
                c = "0" if t == 0 else vr(SC, 4)
                a(f"v_mfma_f32_16x16x32_bf16 {vr(SC,4)}, {vr(tt,4)}, {vr(QF+4*t,4)}, {c}")
            for i in range(32):
                a(f"v_mov_b32 v{ACC+i}, 0")
            a(f"v_cvt_pk_bf16_f32 v4, v{SC}, v{SC+1}")
            a(f"v_cvt_pk_bf16_f32 v5, v{SC+2}, v{SC+3}")
            a(f"v_lshlrev_b32 v6, 16, v4")
            a(f"v_and_b32 v7, 0xffff0000, v4")
            a(f"v_lshlrev_b32 v8, 16, v5")
            a(f"v_and_b32 v9, 0xffff0000, v5")
            a(f"s_mov_b32 s{sT0}, 0x3db504f3")
            for i in range(4):
                a(f"v_mul_f32 v{6+i}, s{sT0}, v{6+i}")
            a(f"v_cvt_pk_bf16_f32 v4, v6, v7")
            a(f"v_cvt_pk_bf16_f32 v5, v8, v9")
            a(f"v_lshlrev_b32 v6, 16, v4")
            a(f"v_and_b32 v7, 0xffff0000, v4")
            a(f"v_lshlrev_b32 v8, 16, v5")
            a(f"v_and_b32 v9, 0xffff0000, v5")
            a("v_max_f32 v4, v6, v7")
            a("v_max3_f32 v4, v4, v8, v9")
            def xreduce(op):
                a("v_mov_b32 v5, v4")
                a("s_nop 1")
                a("v_permlane32_swap_b32 v4, v5")
                a("s_nop 1")
                a(f"{op} v4, v4, v5")
                a("v_mov_b32 v5, v4")
                a("s_nop 1")
                a("v_permlane16_swap_b32 v4, v5")
                a("s_nop 1")
                a(f"{op} v4, v4, v5")
            xreduce("v_max_f32")
            a(f"s_mov_b32 s{sT0}, 0x3fb8aa3b")
            for i in range(4):
                a(f"v_sub_f32 v{6+i}, v{6+i}, v4")
            for i in range(4):
                a(f"v_mul_f32 v{6+i}, s{sT0}, v{6+i}")
            for i in range(4):
                a(f"v_exp_f32 v{6+i}, v{6+i}")
            a("s_nop 0")
            a("v_add_f32 v4, v6, v7")
            a("v_add_f32 v5, v8, v9")
            a("v_add_f32 v4, v4, v5")
            xreduce("v_add_f32")
            a("v_rcp_f32 v4, v4")
            a("s_nop 0")
            for i in range(4):
                a(f"v_mul_f32 v{6+i}, v4, v{6+i}")
            a(f"v_cvt_pk_bf16_f32 v{PP}, v6, v7")
            a(f"v_cvt_pk_bf16_f32 v{PP+1}, v8, v9")
    a("s_nop 7")
    O = KB
    a("s_waitcnt vmcnt(0)")
    for j in range(8):
        tt = TMP + 2 * (j & 3)
        a(f"v_cvt_pk_bf16_f32 v{tt}, v{ACC+4*j}, v{ACC+4*j+1}")
        a(f"v_cvt_pk_bf16_f32 v{tt+1}, v{ACC+4*j+2}, v{ACC+4*j+3}")
        a("s_nop 1")
        a(f"v_mfma_f32_16x16x16_bf16 {vr(O+4*j,4)}, {vr(PP,2)}, {vr(tt,2)}, 0")
    a("s_nop 7")
    a("v_lshrrev_b32 v5, 4, v0")
    a("v_and_b32 v4, 15, v0")
    a("v_lshlrev_b32 v3, 10, v5")
    a("v_lshl_add_u32 v3, v4, 4, v3")
    for t in range(4):
        for vv in range(4):
            a(f"v_cvt_pk_bf16_f32 v{ACC+4*t+vv}, v{O+4*(2*vv)+t}, v{O+4*(2*vv+1)+t}")
        a(f"buffer_store_dwordx4 {vr(ACC+4*t,4)}, v3, s[{SO}:{SO+3}], 0 offen offset:{t*256} {oflags}")
    if stamp:
        a(f"s_mov_b32 s68, s56")
        a(f"s_and_b32 s69, s57, 0xffff")
        a(f"s_mov_b32 s70, 0x10000000")
        a(f"s_mov_b32 s71, 0x20000")
        a("s_waitcnt vmcnt(0)")
        a("s_memrealtime s[42:43]")
        a(f"s_getreg_b32 s72, hwreg(HW_REG_XCC_ID)")
        a(f"s_getreg_b32 s73, hwreg(HW_REG_HW_ID)")
        a("s_waitcnt lgkmcnt(0)")
        a(f"v_mov_b32 v4, s{sStart}")
        a(f"v_mov_b32 v5, s{sStart+1}")
        a(f"v_mov_b32 v6, s42")
        a(f"v_mov_b32 v7, s43")
        a(f"v_mov_b32 v8, s72")
        a(f"v_mov_b32 v9, s73")
        a(f"v_mov_b32 v10, 0")
        a(f"v_mov_b32 v11, 0")
        a(f"s_lshl_b32 s{sT1}, s{sHead}, 5")
        a(f"v_mov_b32 v3, 0")
        a("v_cmp_eq_u32 vcc, 0, v0")
        a("s_and_saveexec_b64 s[74:75], vcc")
        a(f"buffer_store_dwordx4 v[4:7], v3, s[68:71], s{sT1} offen")
        a(f"buffer_store_dwordx4 v[8:11], v3, s[68:71], s{sT1} offen offset:16")
        a("s_mov_b64 exec, s[74:75]")
        if stamp == 2:
            a(f"s_lshl_b32 s{sT1}, s{sHead}, 8")
            a(f"s_add_u32 s{sT1}, s{sT1}, 0x200000")
            a("v_lshlrev_b32 v3, 2, v0")
            a(f"buffer_store_dword v62, v3, s[68:71], s{sT1} offen")
    a.label("L_end")
    a("s_endpgm")
    return wrap(a.text(), nwg, hpw * 64, lds, nv, accum), dict(nwaves=512, nv=nv)

if __name__ == "__main__":
    import json
    kw = json.loads(sys.argv[1]) if len(sys.argv) > 1 else {}
    s, info = gen(**kw)
    print(s)
```

```python
import sys
from asmlib import *

def gen(D=4, flags="nt", eflags="", lds=81920, stagger=0, hpw=1, stamp=False, W=0, X=-1, oflags="", openK=0, openV=0,
        ctrl=False, P=32, RP=2, G=4, L0=5, Xb=7, bias=8, vtouch=False, pub=True, rd=True, pubop="atomic", local=False, aflags="sc1", rflags="sc1", nag=512):
    a = Asm()
    nwg = 512 // hpw
    steps = 128
    assert steps % D == 0
    VOFFK, VOFFE, VOFFQ = 1, 2, 3
    TMP = 4
    ACC = 12
    QF = 44
    PP = 60
    KB = 72
    EB = KB + 32 * D
    nv = EB + 4 * D
    assert nv <= 256
    accum = (nv + 3) // 4 * 4
    eb = lambda i: vr(EB + 4 * i, 4)
    SK, SV, SE, SF = 4, 8, 12, 16
    SP, SPE = 20, 24
    sOffK, sOffE, sCnt, sSelLo, sSelHi = 28, 29, 30, 31, 32
    sWave, sHead, sT0, sT1 = 33, 35, 36, 37
    sStart = 40
    SQ, SO = 60, 64
    a(f"s_cmp_ge_u32 s2, {nwg}")
    a("s_cbranch_scc1 L_end")
    if stamp:
        a(f"s_memrealtime s[{sStart}:{sStart+1}]")
    a("s_load_dwordx4 s[44:47], s[0:1], 0")
    a("s_load_dwordx4 s[48:51], s[0:1], 16")
    a("s_load_dwordx4 s[52:55], s[0:1], 32")
    if stamp:
        a("s_load_dwordx2 s[56:57], s[0:1], 56")
    if ctrl:
        a("s_load_dwordx2 s[58:59], s[0:1], 48")
    if hpw > 1:
        a("v_lshrrev_b32 v3, 6, v0")
        a("v_and_b32 v0, 63, v0")
        a(f"v_readfirstlane_b32 s{sWave}, v3")
    a("v_and_b32 v4, 15, v0")
    a("v_lshrrev_b32 v5, 4, v0")
    a(f"v_lshlrev_b32 v{VOFFK}, 11, v5")
    a(f"v_lshl_add_u32 v{VOFFK}, v4, 4, v{VOFFK}")
    a(f"v_lshlrev_b32 v{VOFFE}, 13, v4")
    a(f"v_lshl_add_u32 v{VOFFE}, v5, 4, v{VOFFE}")
    a(f"v_lshlrev_b32 v{VOFFQ}, 8, v4")
    a(f"v_lshl_add_u32 v{VOFFQ}, v5, 6, v{VOFFQ}")
    if hpw > 1:
        a(f"s_mul_i32 s{sHead}, s2, {hpw}")
        a(f"s_add_u32 s{sHead}, s{sHead}, s{sWave}")
    else:
        a(f"s_mov_b32 s{sHead}, s2")
    a("s_waitcnt lgkmcnt(0)")
    if stamp == 3:
        a("s_memrealtime s[80:81]")
    a(f"s_lshl_b32 s{sT0}, s{sHead}, 20")
    for (S, p) in ((SK, 46), (SV, 48)):
        a(f"s_add_u32 s{S}, s{p}, s{sT0}")
        a(f"s_addc_u32 s{S+1}, s{p+1}, 0")
        a(f"s_and_b32 s{S+1}, s{S+1}, 0xffff")
        a(f"s_mov_b32 s{S+2}, 0x100000")
        a(f"s_mov_b32 s{S+3}, 0x20000")
    for (S, p) in ((SE, 50), (SF, 52)):
        a(f"s_mov_b32 s{S}, s{p}")
        a(f"s_and_b32 s{S+1}, s{p+1}, 0xffff")
        a(f"s_mov_b32 s{S+2}, 0x20000")
        a(f"s_mov_b32 s{S+3}, 0x20000")
    a(f"s_lshl_b32 s{sT0}, s{sHead}, 12")
    for (S, p) in ((SQ, 44), (SO, 54)):
        a(f"s_add_u32 s{S}, s{p}, s{sT0}")
        a(f"s_addc_u32 s{S+1}, s{p+1}, 0")
        a(f"s_and_b32 s{S+1}, s{S+1}, 0xffff")
        a(f"s_mov_b32 s{S+2}, 0x1000")
        a(f"s_mov_b32 s{S+3}, 0x20000")
    SD = 88
    sN, sPh, sL, sC, sNr = 92, 93, 94, 95, 96
    VONE, VCOFF, VC = 63, 68, 69
    if ctrl:
        a(f"s_mov_b32 s{SD}, s58")
        a(f"s_and_b32 s{SD+1}, s59, 0xffff")
        a(f"s_mov_b32 s{SD+2}, 256")
        a(f"s_mov_b32 s{SD+3}, 0x20000")
        a(f"s_mov_b32 s{sN}, 0")
        a(f"s_mov_b32 s{sNr}, 0")
        a(f"s_mov_b32 s{sC}, 0")
        a(f"s_lshr_b32 s{sPh}, s{sHead}, 3")
        a(f"s_mov_b32 s{sL}, {L0}")
        a(f"v_mov_b32 v{VONE}, 1")
        a(f"v_cmp_eq_u32 vcc, 0, v0")
        a(f"v_mov_b32 v{VCOFF}, 0x40000000")
        a(f"s_nop 0")
        if local:
            a(f"s_getreg_b32 s{sT0}, hwreg(HW_REG_XCC_ID, 0, 3)")
            a(f"s_lshl_b32 s{sT0}, s{sT0}, 2")
            a(f"v_mov_b32 v{VC}, s{sT0}")
            a(f"v_cndmask_b32 v{VCOFF}, v{VCOFF}, v{VC}, vcc")
        else:
            a(f"v_cndmask_b32 v{VCOFF}, v{VCOFF}, 0, vcc")
        a(f"v_mov_b32 v{VC}, 0")
    a(f"s_mov_b32 s{sSelLo}, 0x05040100")
    a(f"s_mov_b32 s{sSelHi}, 0x07060302")
    if stagger:
        a(f"s_mul_i32 s{sT0}, s{sHead}, {stagger}")
        a(f"s_and_b32 s{sT0}, s{sT0}, 127")
        a(f"s_lshl_b32 s{sOffK}, s{sT0}, 13")
        a(f"s_lshl_b32 s{sOffE}, s{sT0}, 6")
    else:
        a(f"s_mov_b32 s{sOffK}, 0")
        a(f"s_mov_b32 s{sOffE}, 0")
    for i in range(4):
        a(f"s_mov_b32 s{SP+i}, s{SK+i}")
        a(f"s_mov_b32 s{SPE+i}, s{SE+i}")

    lab = [0]
    def issue(b, gate=True, opn=0, inloop=False):
        if ctrl and inloop:
            lab[0] += 1
            L = lab[0]
            a(f"s_waitcnt vmcnt({Xb+3})")
            for lev in (3, 2, 1):
                a(f"s_cmp_ge_u32 s{sL}, {4*lev-b}")
                a(f"s_cbranch_scc1 L_go{L}")
                a(f"s_waitcnt vmcnt({Xb+lev-1})")
            a.label(f"L_go{L}")
            if b == 2:
                a(f"v_readfirstlane_b32 s{sC}, v{VC}")
                a(f"s_lshl_b32 s{sT0}, s{sNr}, 4")
                a(f"s_mul_i32 s{sC}, s{sC}, {16 * P // nag}")
                a(f"s_sub_i32 s{sT0}, s{sT0}, s{sC}")
                a(f"s_sub_i32 s{sT0}, s{sT0}, {bias}")
                a(f"s_mul_i32 s{sT0}, s{sT0}, {G}")
                a(f"s_ashr_i32 s{sT0}, s{sT0}, 5")
                a(f"s_sub_i32 s{sT0}, {L0}, s{sT0}")
                a(f"s_max_i32 s{sT0}, s{sT0}, 0")
                a(f"s_min_i32 s{sL}, s{sT0}, 12")
            if b == 0 and rd:
                a(f"s_lshr_b32 s{sT0}, s{sN}, 2")
                a(f"s_add_u32 s{sT0}, s{sT0}, s{sPh}")
                a(f"s_and_b32 s{sT0}, s{sT0}, {RP-1}")
                a(f"s_cbranch_scc1 L_nord{L}")
                a(f"s_mov_b32 s{sNr}, s{sN}")
                a(f"buffer_load_dword v{VC}, v{VCOFF}, s[{SD}:{SD+3}], 0 offen {rflags}")
                a.label(f"L_nord{L}")
            a(f"s_add_u32 s{sN}, s{sN}, 1")
            a(f"s_add_u32 s{sT0}, s{sN}, s{sPh}")
            a(f"s_and_b32 s{sT0}, s{sT0}, {P-1}")
            a(f"s_cbranch_scc1 L_nopub{L}")
            if pub and pubop == "atomic":
                a(f"buffer_atomic_add v{VONE}, v{VCOFF}, s[{SD}:{SD+3}], 0 offen {aflags}")
            elif pub:
                a(f"buffer_store_dword v{VONE}, v{VCOFF}, s[{SD}:{SD+3}], 0 offen sc1")
            a.label(f"L_nopub{L}")
        elif gate and X >= 0:
            if opn:
                lab[0] += 1
                a(f"s_cmp_le_u32 s{sCnt}, {opn}")
                a(f"s_cbranch_scc1 L_open{lab[0]}")
            a(f"s_waitcnt vmcnt({X})")
            if opn:
                a.label(f"L_open{lab[0]}")
        if gate and W:
            a(f"s_waitcnt vmcnt({W-1})")
        a(f"buffer_load_dwordx4 {eb(b)}, v{VOFFE}, s[{SPE}:{SPE+3}], s{sOffE} offen {eflags}")
        for i in range(8):
            if gate and W:
                a(f"s_waitcnt vmcnt({W-1})")
            a(f"buffer_load_dwordx4 {vr(KB+32*b+4*i,4)}, v{VOFFK}, s[{SP}:{SP+3}], s{sOffK} offen offset:{i*256} {flags}")
        a(f"s_add_u32 s{sOffK}, s{sOffK}, 8192")
        a(f"s_and_b32 s{sOffK}, s{sOffK}, 0xfffff")
        a(f"s_add_u32 s{sOffE}, s{sOffE}, 64")
        a(f"s_and_b32 s{sOffE}, s{sOffE}, 0x1fff")

    def consume(b, isV):
        def perms(j):
            t = TMP + 4 * (j & 1)
            p = j >> 1
            sel = sSelHi if (j & 1) else sSelLo
            for vv in range(4):
                r0 = KB + 32 * b + 4 * (2 * vv) + p
                r1 = KB + 32 * b + 4 * (2 * vv + 1) + p
                a(f"v_perm_b32 v{t+vv}, v{r1}, v{r0}, s{sel}")
        def mf(j):
            t = TMP + 4 * (j & 1)
            if isV:
                a(f"v_mfma_f32_16x16x32_bf16 {vr(ACC+4*j,4)}, {eb(b)}, {vr(t,4)}, {vr(ACC+4*j,4)}")
            else:
                a(f"v_mfma_f32_16x16x32_bf16 {vr(ACC+4*j,4)}, {vr(t,4)}, {eb(b)}, {vr(ACC+4*j,4)}")
        perms(0)
        for j in range(8):
            if j + 1 < 8:
                perms(j + 1)
            else:
                a("s_nop 1")
            mf(j)

    for b in range(D):
        issue(b)
        if b == 0 and stamp == 3:
            a("s_memrealtime s[82:83]")
            a("s_waitcnt vmcnt(0)")
            a("s_memrealtime s[84:85]")
        if b == 0:
            for t in range(4):
                a(f"buffer_load_dwordx4 {vr(QF+4*t,4)}, v{VOFFQ}, s[{SQ}:{SQ+3}], 0 offen offset:{t*16}")
    for i in range(32):
        a(f"v_mov_b32 v{ACC+i}, 0")
    if stamp in (2, 4):
        a("s_mov_b32 s76, 0")
        a("v_mov_b32 v62, 0")
    for ph in range(2):
        last = ph == 1
        a(f"s_mov_b32 s{sCnt}, {steps // D}")
        a.label(f"L_loop{ph}")
        a(f"s_cmp_eq_u32 s{sCnt}, 1")
        a(f"s_cbranch_scc0 L_nosw{ph}")
        if last:
            a(f"s_mov_b32 s{SP+2}, 0")
            a(f"s_mov_b32 s{SPE+2}, 0")
        else:
            for i in range(3):
                a(f"s_mov_b32 s{SP+i}, s{SV+i}")
                a(f"s_mov_b32 s{SPE+i}, s{SF+i}")
        a.label(f"L_nosw{ph}")
        for b in range(D):
            a(f"s_waitcnt vmcnt({(D-1)*9})")
            if stamp == 2 and b == 0:
                a("s_memrealtime s[42:43]")
            consume(b, ph == 1)
            issue(b, True, openV if ph == 1 else openK, True)
            if stamp == 4 and b == 3:
                a(f"s_mov_b32 m0, s76")
                a(f"s_add_u32 s76, s76, 1")
                a(f"v_writelane_b32 v62, s{sL}, m0")
            if stamp == 2 and b == 0:
                a("s_waitcnt lgkmcnt(0)")
                a(f"s_lshr_b32 m0, s76, {(4 // D).bit_length() - 1}")
                a(f"s_add_u32 s76, s76, 1")
                a("v_writelane_b32 v62, s42, m0")
        a(f"s_sub_u32 s{sCnt}, s{sCnt}, 1")
        a(f"s_cmp_lg_u32 s{sCnt}, 0")
        a(f"s_cbranch_scc1 L_loop{ph}")
        if ph == 0:
            KP = TMP
            S = 56
            a("s_nop 7")
            SC = 64
            for t in range(4):
                tt = TMP + 4 * (t & 1)
                for vv in range(4):
                    a(f"v_cvt_pk_bf16_f32 v{tt+vv}, v{ACC+4*(2*vv)+t}, v{ACC+4*(2*vv+1)+t}")
                a("s_nop 1")
                c = "0" if t == 0 else vr(SC, 4)
                a(f"v_mfma_f32_16x16x32_bf16 {vr(SC,4)}, {vr(tt,4)}, {vr(QF+4*t,4)}, {c}")
            for i in range(32):
                a(f"v_mov_b32 v{ACC+i}, 0")
            a(f"v_cvt_pk_bf16_f32 v4, v{SC}, v{SC+1}")
            a(f"v_cvt_pk_bf16_f32 v5, v{SC+2}, v{SC+3}")
            a(f"v_lshlrev_b32 v6, 16, v4")
            a(f"v_and_b32 v7, 0xffff0000, v4")
            a(f"v_lshlrev_b32 v8, 16, v5")
            a(f"v_and_b32 v9, 0xffff0000, v5")
            a(f"s_mov_b32 s{sT0}, 0x3db504f3")
            for i in range(4):
                a(f"v_mul_f32 v{6+i}, s{sT0}, v{6+i}")
            a(f"v_cvt_pk_bf16_f32 v4, v6, v7")
            a(f"v_cvt_pk_bf16_f32 v5, v8, v9")
            a(f"v_lshlrev_b32 v6, 16, v4")
            a(f"v_and_b32 v7, 0xffff0000, v4")
            a(f"v_lshlrev_b32 v8, 16, v5")
            a(f"v_and_b32 v9, 0xffff0000, v5")
            a("v_max_f32 v4, v6, v7")
            a("v_max3_f32 v4, v4, v8, v9")
            def xreduce(op):
                a("v_mov_b32 v5, v4")
                a("s_nop 1")
                a("v_permlane32_swap_b32 v4, v5")
                a("s_nop 1")
                a(f"{op} v4, v4, v5")
                a("v_mov_b32 v5, v4")
                a("s_nop 1")
                a("v_permlane16_swap_b32 v4, v5")
                a("s_nop 1")
                a(f"{op} v4, v4, v5")
            xreduce("v_max_f32")
            a(f"s_mov_b32 s{sT0}, 0x3fb8aa3b")
            for i in range(4):
                a(f"v_sub_f32 v{6+i}, v{6+i}, v4")
            for i in range(4):
                a(f"v_mul_f32 v{6+i}, s{sT0}, v{6+i}")
            for i in range(4):
                a(f"v_exp_f32 v{6+i}, v{6+i}")
            a("s_nop 0")
            a("v_add_f32 v4, v6, v7")
            a("v_add_f32 v5, v8, v9")
            a("v_add_f32 v4, v4, v5")
            xreduce("v_add_f32")
            a("v_rcp_f32 v4, v4")
            a("s_nop 0")
            for i in range(4):
                a(f"v_mul_f32 v{6+i}, v4, v{6+i}")
            a(f"v_cvt_pk_bf16_f32 v{PP}, v6, v7")
            a(f"v_cvt_pk_bf16_f32 v{PP+1}, v8, v9")
    a("s_nop 7")
    O = KB
    a("s_waitcnt vmcnt(0)")
    for j in range(8):
        tt = TMP + 2 * (j & 3)
        a(f"v_cvt_pk_bf16_f32 v{tt}, v{ACC+4*j}, v{ACC+4*j+1}")
        a(f"v_cvt_pk_bf16_f32 v{tt+1}, v{ACC+4*j+2}, v{ACC+4*j+3}")
        a("s_nop 1")
        a(f"v_mfma_f32_16x16x16_bf16 {vr(O+4*j,4)}, {vr(PP,2)}, {vr(tt,2)}, 0")
    a("s_nop 7")
    a("v_lshrrev_b32 v5, 4, v0")
    a("v_and_b32 v4, 15, v0")
    a("v_lshlrev_b32 v3, 10, v5")
    a("v_lshl_add_u32 v3, v4, 4, v3")
    for t in range(4):
        for vv in range(4):
            a(f"v_cvt_pk_bf16_f32 v{ACC+4*t+vv}, v{O+4*(2*vv)+t}, v{O+4*(2*vv+1)+t}")
        a(f"buffer_store_dwordx4 {vr(ACC+4*t,4)}, v3, s[{SO}:{SO+3}], 0 offen offset:{t*256} {oflags}")
    if stamp:
        a(f"s_mov_b32 s68, s56")
        a(f"s_and_b32 s69, s57, 0xffff")
        a(f"s_mov_b32 s70, 0x10000000")
        a(f"s_mov_b32 s71, 0x20000")
        a("s_waitcnt vmcnt(0)")
        a("s_memrealtime s[42:43]")
        a(f"s_getreg_b32 s72, hwreg(HW_REG_XCC_ID)")
        a(f"s_getreg_b32 s73, hwreg(HW_REG_HW_ID)")
        a("s_waitcnt lgkmcnt(0)")
        a(f"v_mov_b32 v4, s{sStart}")
        a(f"v_mov_b32 v5, s{sStart+1}")
        a(f"v_mov_b32 v6, s42")
        a(f"v_mov_b32 v7, s43")
        a(f"v_mov_b32 v8, s72")
        a(f"v_mov_b32 v9, s73")
        if stamp == 3:
            a("s_sub_u32 s80, s80, s40")
            a("s_sub_u32 s82, s82, s40")
            a("s_sub_u32 s84, s84, s40")
            a("s_lshl_b32 s82, s82, 16")
            a("s_or_b32 s80, s80, s82")
            a(f"v_mov_b32 v10, s80")
            a(f"v_mov_b32 v11, s84")
        else:
            a(f"v_mov_b32 v10, 0")
            a(f"v_mov_b32 v11, 0")
        a(f"s_lshl_b32 s{sT1}, s{sHead}, 5")
        a(f"v_mov_b32 v3, 0")
        a("v_cmp_eq_u32 vcc, 0, v0")
        a("s_and_saveexec_b64 s[74:75], vcc")
        a(f"buffer_store_dwordx4 v[4:7], v3, s[68:71], s{sT1} offen")
        a(f"buffer_store_dwordx4 v[8:11], v3, s[68:71], s{sT1} offen offset:16")
        a("s_mov_b64 exec, s[74:75]")
        if stamp in (2, 4):
            a(f"s_lshl_b32 s{sT1}, s{sHead}, 8")
            a(f"s_add_u32 s{sT1}, s{sT1}, 0x200000")
            a("v_lshlrev_b32 v3, 2, v0")
            a(f"buffer_store_dword v62, v3, s[68:71], s{sT1} offen")
    a.label("L_end")
    a("s_endpgm")
    return wrap(a.text(), nwg, hpw * 64, lds, nv, accum), dict(nwaves=512, nv=nv)

if __name__ == "__main__":
    import json
    kw = json.loads(sys.argv[1]) if len(sys.argv) > 1 else {}
    s, info = gen(**kw)
    print(s)
```

```python
import sys
from asmlib import *

def gen(D=4, flags="nt", eflags="", lds=81920, stamp=0, oflags="sc0 sc1", mode="X", Xb=7, Wb=8, Ws=2, W0=0, X0=-1,
        G=2, L0=4, bias=64, Lmax=12, glob=False, RG=1, endpub=0, rflags="sc1", gsflags="sc1", grflags="sc1",
        fb=True, nlev=4, ldfirst=True, stag=True, repfree=True, rot=False, rotlast=28, rotstep=1, filt=0, centre=0, goff=2, par=0, helper=False, clampv=93, hmax=128, hthr=31*256):
    a = Asm()
    nwg = 512
    steps = 128
    VOFFK, VOFFE, VOFFQ = 1, 2, 3
    TMP = 4
    ACC = 12
    QF = 44
    PP = 60
    VHIST, VT = 62, 63
    SC = 64
    VCOFF, VC, VROFF, VPUB = 68, 69, 70, 71
    VGW, VGR, VG, VOW = 72, 73, 74, 75
    KB = 76
    EB = KB + 32 * D
    nv = EB + 4 * D
    assert nv <= 256
    accum = (nv + 3) // 4 * 4
    eb = lambda i: vr(EB + 4 * i, 4)
    SK, SV, SE, SF = 4, 8, 12, 16
    SP, SPE = 20, 24
    sOffK, sOffE, sCnt, sSelLo, sSelHi = 28, 29, 30, 31, 32
    sT0, sT1 = 36, 37
    sStart = 40
    SQ, SO, SD = 60, 64, 88
    sN, sL, sC, sNr, sRep, sOwn, sPrev = 92, 94, 95, 96, 97, 98, 99
    sPh, sLsum, sNl, sRph = 93, 87, 86, 85
    sRepN, sRepN2, sX, sBias = 84, 83, 82, 81
    pq, pk, pv, pe, pf, po, pd = 44, 46, 48, 50, 52, 54, 58
    ngrid = nwg + (8 if helper else 0)
    a(f"s_cmp_ge_u32 s2, {ngrid}")
    a("s_cbranch_scc1 L_end")
    if helper:
        a(f"s_cmp_ge_u32 s2, {nwg}")
        a("s_cbranch_scc1 L_helper")
    if stamp:
        a(f"s_memrealtime s[{sStart}:{sStart+1}]")
    a("s_load_dwordx4 s[44:47], s[0:1], 0")
    a("s_load_dwordx4 s[48:51], s[0:1], 16")
    a("s_load_dwordx4 s[52:55], s[0:1], 32")
    a("s_load_dwordx2 s[58:59], s[0:1], 48")
    if stamp:
        a("s_load_dwordx2 s[56:57], s[0:1], 56")
    a("v_and_b32 v4, 15, v0")
    a("v_lshrrev_b32 v5, 4, v0")
    a(f"v_lshlrev_b32 v{VOFFK}, 11, v5")
    a(f"v_lshl_add_u32 v{VOFFK}, v4, 4, v{VOFFK}")
    a(f"v_lshlrev_b32 v{VOFFE}, 13, v4")
    a(f"v_lshl_add_u32 v{VOFFE}, v5, 4, v{VOFFE}")
    a(f"s_lshl_b32 s{sT0}, s2, 20")
    a(f"s_mov_b32 s{SP+2}, 0x100000")
    a(f"s_mov_b32 s{SP+3}, 0x20000")
    a(f"s_mov_b32 s{SPE+2}, 0x20000")
    a(f"s_mov_b32 s{SPE+3}, 0x20000")
    a(f"s_mov_b32 s{sOffK}, 0")
    a(f"s_mov_b32 s{sOffE}, 0")
    a("s_waitcnt lgkmcnt(0)")
    a(f"s_add_u32 s{SP}, s{pk}, s{sT0}")
    a(f"s_addc_u32 s{SP+1}, s{pk+1}, 0")
    a(f"s_and_b32 s{SP+1}, s{SP+1}, 0xffff")
    a(f"s_mov_b32 s{SPE}, s{pe}")
    a(f"s_and_b32 s{SPE+1}, s{pe+1}, 0xffff")

    lab = [0]
    def loads(b, Wv):
        if Wv:
            a(f"s_waitcnt vmcnt({Wv-1})")
        a(f"buffer_load_dwordx4 {eb(b)}, v{VOFFE}, s[{SPE}:{SPE+3}], s{sOffE} offen {eflags}")
        for i in range(8):
            if Wv:
                a(f"s_waitcnt vmcnt({Wv-1})")
            a(f"buffer_load_dwordx4 {vr(KB+32*b+4*i,4)}, v{VOFFK}, s[{SP}:{SP+3}], s{sOffK} offen offset:{i*256} {flags}")
    def advance():
        a(f"s_add_u32 s{sOffK}, s{sOffK}, 8192")
        a(f"s_and_b32 s{sOffK}, s{sOffK}, 0xfffff")
        a(f"s_add_u32 s{sOffE}, s{sOffE}, 64")
        a(f"s_and_b32 s{sOffE}, s{sOffE}, 0x1fff")
    def rowsum(dst, src, shifts):
        first = True
        for sh in shifts:
            s_ = src if first else dst
            a(f"v_add_u32_dpp v{dst}, v{s_}, v{s_} row_shr:{sh} row_mask:0xf bank_mask:0xf bound_ctrl:0")
            a("s_nop 1")
            first = False

    def issue(b):
        lab[0] += 1
        L = lab[0]
        if mode == "X":
            if glob and repfree:
                for ph_ in (b, (b + 3) & 3):
                    a(f"s_cmp_eq_u32 s{sRep}, {ph_ + 1}")
                    a(f"s_cbranch_scc1 L_go{L}")
            a(f"s_waitcnt vmcnt({Xb+3})")
            for lev in (3, 2, 1):
                a(f"s_cmp_ge_u32 s{sL}, {4*lev-b}")
                a(f"s_cbranch_scc1 L_go{L}")
                a(f"s_waitcnt vmcnt({Xb+lev-1})")
            a.label(f"L_go{L}")
        if fb and b == 2:
            rowsum(VT, VC, (1, 2, 4, 8))
            a(f"v_readlane_b32 s{sC}, v{VT}, 15")
            a(f"v_readlane_b32 s{sT0}, v{VT}, 31")
            a(f"s_mul_i32 s{sT1}, s{sNr}, 31")
            a(f"s_add_i32 s{sC}, s{sC}, s{sT0}")
            a(f"s_sub_i32 s{sT0}, s{sT1}, s{sC}")
            if stamp == 6:
                a(f"s_lshr_b32 m0, s{sNr}, 2")
                a(f"s_nop 0")
                a(f"v_writelane_b32 v{VHIST}, s{sT0}, m0")
            if par:
                a(f"s_sub_i32 s{sT0}, s{sT0}, s{sBias}")
            else:
                a(f"s_sub_i32 s{sT0}, s{sT0}, {bias}")
            a(f"s_mul_i32 s{sT0}, s{sT0}, {G}")
            a(f"s_ashr_i32 s{sT0}, s{sT0}, 6")
            a(f"s_sub_i32 s{sT0}, {L0}, s{sT0}")
            a(f"s_max_i32 s{sT0}, s{sT0}, 0")
            a(f"s_min_i32 s{sL}, s{sT0}, {Lmax}")
            if glob or rot:
                a(f"v_readlane_b32 s{sT0}, v{VC}, 0")
                a(f"s_nop 0")
                a(f"s_sub_i32 s{sLsum}, s{sC}, s{sT0}")
                a(f"s_mov_b32 s{sNl}, s{sNr}")
        if fb and rot:
            a(f"s_cmp_eq_u32 s{sN}, s{sRepN2}")
            a(f"s_cbranch_scc0 L_nq{L}")
            rowsum(VT, VG, (1, 2, 4))
            a(f"v_readlane_b32 s{sT0}, v{VT}, 7")
            a(f"v_readlane_b32 s{sT1}, v{VG}, s{sX}")
            a(f"s_ashr_i32 s{sT0}, s{sT0}, 3")
            a(f"s_add_i32 s{sT1}, s{sT1}, s{sOwn}")
            a(f"s_ashr_i32 s{sT1}, s{sT1}, 1")
            a(f"s_sub_i32 s{sT0}, s{sT0}, s{sT1}")
            if goff != 2:
                a(f"s_mul_i32 s{sT0}, s{sT0}, {goff}")
                a(f"s_ashr_i32 s{sT0}, s{sT0}, 1")
            if filt:
                a(f"v_readlane_b32 s{sT1}, v{VC}, 0")
                a(f"s_add_i32 s{sT0}, s{sT0}, {centre}")
                a(f"s_sub_i32 s{sT0}, s{sT0}, s{sT1}")
                a(f"s_ashr_i32 s{sT0}, s{sT0}, {filt}")
                a(f"s_add_i32 s{sT0}, s{sT0}, s{sT1}")
            a(f"s_max_i32 s{sT0}, s{sT0}, {-clampv}")
            a(f"s_min_i32 s{sT0}, s{sT0}, {clampv}")
            a(f"v_mov_b32 v{VT}, s{sT0}")
            a(f"buffer_store_dword v{VT}, v{VOW}, s[{SD}:{SD+3}], 0 offen")
            a.label(f"L_nq{L}")
            a(f"s_cmp_eq_u32 s{sN}, s{sRepN}")
            a(f"s_cbranch_scc0 L_nr{L}")
            a(f"s_sub_i32 s{sOwn}, s{sN}, s{sNl}")
            a(f"s_mul_i32 s{sOwn}, s{sOwn}, 31")
            a(f"s_add_i32 s{sOwn}, s{sOwn}, s{sLsum}")
            a(f"v_mov_b32 v{VT}, s{sOwn}")
            a(f"buffer_load_dword v{VG}, v{VGR}, s[{SD}:{SD+3}], 0 offen {grflags}")
            a(f"buffer_store_dword v{VT}, v{VGW}, s[{SD}:{SD+3}], 0 offen {gsflags}")
            a.label(f"L_nr{L}")
        if fb and glob:
            a(f"s_cmp_eq_u32 s{sRep}, {((b + 2) & 3) + 1}")
            a(f"s_cbranch_scc0 L_nq{L}")
            if mode == "F":
                a("s_waitcnt vmcnt(19)")
            rowsum(VT, VG, (1, 2, 4))
            a(f"v_readlane_b32 s{sT0}, v{VT}, 7")
            a(f"s_add_i32 s{sT1}, s{sOwn}, s{sPrev}")
            a(f"s_ashr_i32 s{sT0}, s{sT0}, 3")
            a(f"s_ashr_i32 s{sT1}, s{sT1}, 1")
            a(f"s_sub_i32 s{sT0}, s{sT0}, s{sT1}")
            a(f"v_mov_b32 v{VT}, s{sT0}")
            a(f"buffer_store_dword v{VT}, v{VOW}, s[{SD}:{SD+3}], 0 offen")
            a.label(f"L_nq{L}")
            a(f"s_cmp_eq_u32 s{sRep}, {b + 1}")
            a(f"s_cbranch_scc0 L_nr{L}")
            if RG > 1:
                a(f"s_lshr_b32 s{sT0}, s{sN}, 2")
                a(f"s_add_u32 s{sT0}, s{sT0}, s{sRph}")
                a(f"s_and_b32 s{sT0}, s{sT0}, {RG-1}")
                a(f"s_cbranch_scc1 L_nr{L}")
            a(f"s_mov_b32 s{sPrev}, s{sOwn}")
            a(f"s_sub_i32 s{sOwn}, s{sN}, s{sNl}")
            a(f"s_mul_i32 s{sOwn}, s{sOwn}, 31")
            a(f"s_add_i32 s{sOwn}, s{sOwn}, s{sLsum}")
            a(f"v_mov_b32 v{VT}, s{sOwn}")
            a(f"buffer_load_dword v{VG}, v{VGR}, s[{SD}:{SD+3}], 0 offen {grflags}")
            a(f"buffer_store_dword v{VT}, v{VGW}, s[{SD}:{SD+3}], 0 offen {gsflags}")
            a.label(f"L_nr{L}")
        if fb:
            if stag:
                a(f"s_cmp_eq_u32 s{sPh}, {b}")
                a(f"s_cbranch_scc0 L_np{L}")
                a(f"v_mov_b32 v{VPUB}, s{sN}")
                a(f"buffer_store_dword v{VPUB}, v{VCOFF}, s[{SD}:{SD+3}], 0 offen")
                a.label(f"L_np{L}")
            elif b == 0:
                a(f"v_mov_b32 v{VPUB}, s{sN}")
                a(f"buffer_store_dword v{VPUB}, v{VCOFF}, s[{SD}:{SD+3}], 0 offen")
            if b == 0:
                a(f"s_mov_b32 s{sNr}, s{sN}")
                a(f"buffer_load_dword v{VC}, v{VROFF}, s[{SD}:{SD+3}], 0 offen {rflags}")
        a(f"s_add_u32 s{sN}, s{sN}, 1")
        if mode == "F":
            if glob and repfree:
                for ph_ in (b, (b + 3) & 3):
                    a(f"s_cmp_eq_u32 s{sRep}, {ph_ + 1}")
                    a(f"s_cbranch_scc1 L_fr{L}")
            a(f"s_cmp_ge_u32 s{sL}, {8-b}")
            a(f"s_cbranch_scc1 L_hi{L}")
            a(f"s_cmp_ge_u32 s{sL}, {4-b}")
            a(f"s_cbranch_scc1 L_ka{L}")
            loads(b, Wb)
            a(f"s_branch L_dn{L}")
            a.label(f"L_ka{L}")
            loads(b, Wb + Ws)
            a(f"s_branch L_dn{L}")
            a.label(f"L_hi{L}")
            a(f"s_cmp_ge_u32 s{sL}, {12-b}")
            a(f"s_cbranch_scc1 L_kb{L}")
            loads(b, Wb + 2 * Ws)
            a(f"s_branch L_dn{L}")
            a.label(f"L_kb{L}")
            loads(b, Wb + 3 * Ws)
            if glob and repfree:
                a(f"s_branch L_dn{L}")
                a.label(f"L_fr{L}")
                loads(b, 0)
            a.label(f"L_dn{L}")
        else:
            loads(b, 0)
        advance()

    def consume(b, isV):
        def perms(j):
            t = TMP + 4 * (j & 1)
            p = j >> 1
            sel = sSelHi if (j & 1) else sSelLo
            for vv in range(4):
                r0 = KB + 32 * b + 4 * (2 * vv) + p
                r1 = KB + 32 * b + 4 * (2 * vv + 1) + p
                a(f"v_perm_b32 v{t+vv}, v{r1}, v{r0}, s{sel}")
        def mf(j):
            t = TMP + 4 * (j & 1)
            if isV:
                a(f"v_mfma_f32_16x16x32_bf16 {vr(ACC+4*j,4)}, {eb(b)}, {vr(t,4)}, {vr(ACC+4*j,4)}")
            else:
                a(f"v_mfma_f32_16x16x32_bf16 {vr(ACC+4*j,4)}, {vr(t,4)}, {eb(b)}, {vr(ACC+4*j,4)}")
        perms(0)
        for j in range(8):
            if j + 1 < 8:
                perms(j + 1)
            else:
                a("s_nop 1")
            mf(j)

    for b in range(D):
        if X0 >= 0 and b > 0:
            a(f"s_waitcnt vmcnt({X0})")
        loads(b, W0)
        advance()
        if b == 0:
            a(f"v_lshlrev_b32 v{VOFFQ}, 8, v4")
            a(f"v_lshl_add_u32 v{VOFFQ}, v5, 6, v{VOFFQ}")
            for (S, p) in ((SK, pk), (SV, pv)):
                a(f"s_add_u32 s{S}, s{p}, s{sT0}")
                a(f"s_addc_u32 s{S+1}, s{p+1}, 0")
                a(f"s_and_b32 s{S+1}, s{S+1}, 0xffff")
                a(f"s_mov_b32 s{S+2}, 0x100000")
                a(f"s_mov_b32 s{S+3}, 0x20000")
            a(f"s_mov_b32 s{SF}, s{pf}")
            a(f"s_and_b32 s{SF+1}, s{pf+1}, 0xffff")
            a(f"s_mov_b32 s{SF+2}, 0x20000")
            a(f"s_mov_b32 s{SF+3}, 0x20000")
            a(f"s_lshl_b32 s{sT0}, s2, 12")
            for (S, p) in ((SQ, pq), (SO, po)):
                a(f"s_add_u32 s{S}, s{p}, s{sT0}")
                a(f"s_addc_u32 s{S+1}, s{p+1}, 0")
                a(f"s_and_b32 s{S+1}, s{S+1}, 0xffff")
                a(f"s_mov_b32 s{S+2}, 0x1000")
                a(f"s_mov_b32 s{S+3}, 0x20000")
            for t in range(4):
                a(f"buffer_load_dwordx4 {vr(QF+4*t,4)}, v{VOFFQ}, s[{SQ}:{SQ+3}], 0 offen offset:{t*16}")
    a(f"s_mov_b32 s{sSelLo}, 0x05040100")
    a(f"s_mov_b32 s{sSelHi}, 0x07060302")
    a(f"s_mov_b32 s{sN}, 0")
    a(f"s_mov_b32 s{sNr}, 0")
    a(f"s_mov_b32 s{sL}, {L0}")
    if fb:
        a(f"s_mov_b32 s{SD}, s{pd}")
        a(f"s_and_b32 s{SD+1}, s{pd+1}, 0xffff")
        a(f"s_mov_b32 s{SD+2}, 256")
        a(f"s_mov_b32 s{SD+3}, 0x20000")
        a(f"s_lshr_b32 s{sT0}, s2, 3")
        a(f"s_and_b32 s{sPh}, s{sT0}, 3")
        a(f"s_sub_u32 s{sT1}, s{sT0}, 1")
        a(f"s_lshl_b32 s{sT0}, s{sT0}, 2")
        a(f"s_cmp_lt_u32 s{sT1}, 31")
        a(f"s_cselect_b32 s{sT0}, s{sT0}, 0x40000000")
        a(f"v_mov_b32 v{VCOFF}, 0x40000000")
        a(f"v_mov_b32 v{VC}, s{sT0}")
        a(f"v_cmp_eq_u32 vcc, 0, v0")
        a(f"s_nop 0")
        a(f"v_cndmask_b32 v{VCOFF}, v{VCOFF}, v{VC}, vcc")
        a(f"v_lshlrev_b32 v{VROFF}, 2, v0")
        a(f"v_mov_b32 v{VC}, 0x40000000")
        a(f"v_cmp_gt_u32 vcc, 32, v0")
        a(f"s_nop 0")
        a(f"v_cndmask_b32 v{VROFF}, v{VC}, v{VROFF}, vcc")
        if par:
            a(f"s_getreg_b32 s{sT0}, hwreg(HW_REG_XCC_ID, 0, 1)")
            a(f"s_mul_i32 s{sT0}, s{sT0}, {2 * par}")
            a(f"s_sub_i32 s{sBias}, {bias + par}, s{sT0}")
        if rot:
            a(f"s_getreg_b32 s{sX}, hwreg(HW_REG_XCC_ID, 0, 3)")
            a(f"s_lshr_b32 s{sT0}, s2, 3")
            a(f"s_sub_u32 s{sT1}, s{sT0}, 1")
            a(f"s_lshl_b32 s{sT0}, s{sT0}, 3")
            a(f"s_add_u32 s{sT0}, s{sT0}, s{sX}")
            a(f"s_cmp_lt_u32 s{sT1}, {rotlast}")
            a(f"s_cselect_b32 s{sRepN}, s{sT0}, 0x7fff0000")
            if rotstep > 1:
                a(f"s_lshr_b32 s{sT1}, s2, 3")
                a(f"s_and_b32 s{sT1}, s{sT1}, {rotstep-1}")
                a(f"s_cselect_b32 s{sRepN}, 0x7fff0000, s{sRepN}")
            a(f"s_add_u32 s{sRepN2}, s{sRepN}, 2")
            a(f"s_mov_b32 s{sOwn}, 0")
            a(f"s_mov_b32 s{sLsum}, 0")
            a(f"s_mov_b32 s{sNl}, 0")
            a(f"s_lshl_b32 s{sT0}, s{sX}, 2")
            a(f"s_add_u32 s{sT0}, s{sT0}, 128")
            a(f"v_mov_b32 v{VG}, s{sT0}")
            a(f"v_cmp_eq_u32 vcc, 0, v0")
            a(f"s_nop 0")
            a(f"v_cndmask_b32 v{VGW}, v{VC}, v{VG}, vcc")
            a(f"v_mov_b32 v{VG}, 0")
            a(f"s_nop 0")
            a(f"v_cndmask_b32 v{VOW}, v{VC}, v{VG}, vcc")
            a(f"v_lshlrev_b32 v{VGR}, 2, v0")
            a(f"v_add_u32 v{VGR}, 128, v{VGR}")
            a(f"v_cmp_gt_u32 vcc, 8, v0")
            a(f"s_nop 0")
            a(f"v_cndmask_b32 v{VGR}, v{VC}, v{VGR}, vcc")
        if glob:
            a(f"s_and_b32 s{sT0}, s2, 3")
            a(f"s_add_u32 s{sT0}, s{sT0}, 1")
            a(f"s_cmp_lt_u32 s2, 8")
            a(f"s_cselect_b32 s{sRep}, s{sT0}, 0")
            a(f"s_mov_b32 s{sLsum}, 0")
            a(f"s_mov_b32 s{sNl}, 0")
            a(f"s_lshr_b32 s{sRph}, s2, 2")
            a(f"s_mov_b32 s{sOwn}, 0")
            a(f"s_mov_b32 s{sPrev}, 0")
            a(f"s_and_b32 s{sT0}, s2, 7")
            a(f"s_lshl_b32 s{sT0}, s{sT0}, 2")
            a(f"s_add_u32 s{sT0}, s{sT0}, 128")
            a(f"v_mov_b32 v{VG}, s{sT0}")
            a(f"v_cmp_eq_u32 vcc, 0, v0")
            a(f"s_nop 0")
            a(f"v_cndmask_b32 v{VGW}, v{VC}, v{VG}, vcc")
            a(f"v_mov_b32 v{VG}, 0")
            a(f"s_nop 0")
            a(f"v_cndmask_b32 v{VOW}, v{VC}, v{VG}, vcc")
            a(f"v_lshlrev_b32 v{VGR}, 2, v0")
            a(f"v_add_u32 v{VGR}, 128, v{VGR}")
            a(f"v_cmp_gt_u32 vcc, 8, v0")
            a(f"s_nop 0")
            a(f"v_cndmask_b32 v{VGR}, v{VC}, v{VGR}, vcc")
        a(f"v_mov_b32 v{VC}, 0")
    for i in range(32):
        a(f"v_mov_b32 v{ACC+i}, 0")
    if stamp == 6:
        a(f"v_mov_b32 v{VHIST}, 0")
    for ph in range(2):
        last = ph == 1
        a(f"s_mov_b32 s{sCnt}, {steps // D}")
        a.label(f"L_loop{ph}")
        a(f"s_cmp_eq_u32 s{sCnt}, 1")
        a(f"s_cbranch_scc0 L_nosw{ph}")
        if last:
            a(f"s_mov_b32 s{SP+2}, 0")
            a(f"s_mov_b32 s{SPE+2}, 0")
        else:
            for i in range(3):
                a(f"s_mov_b32 s{SP+i}, s{SV+i}")
                a(f"s_mov_b32 s{SPE+i}, s{SF+i}")
        a.label(f"L_nosw{ph}")
        for b in range(D):
            a(f"s_waitcnt vmcnt({(D-1)*9})")
            consume(b, ph == 1)
            issue(b)
        a(f"s_sub_u32 s{sCnt}, s{sCnt}, 1")
        a(f"s_cmp_lg_u32 s{sCnt}, 0")
        a(f"s_cbranch_scc1 L_loop{ph}")
        if ph == 0:
            a("s_nop 7")
            for t in range(4):
                tt = TMP + 4 * (t & 1)
                for vv in range(4):
                    a(f"v_cvt_pk_bf16_f32 v{tt+vv}, v{ACC+4*(2*vv)+t}, v{ACC+4*(2*vv+1)+t}")
                a("s_nop 1")
                c = "0" if t == 0 else vr(SC, 4)
                a(f"v_mfma_f32_16x16x32_bf16 {vr(SC,4)}, {vr(tt,4)}, {vr(QF+4*t,4)}, {c}")
            for i in range(32):
                a(f"v_mov_b32 v{ACC+i}, 0")
            a(f"v_cvt_pk_bf16_f32 v4, v{SC}, v{SC+1}")
            a(f"v_cvt_pk_bf16_f32 v5, v{SC+2}, v{SC+3}")
            a(f"v_lshlrev_b32 v6, 16, v4")
            a(f"v_and_b32 v7, 0xffff0000, v4")
            a(f"v_lshlrev_b32 v8, 16, v5")
            a(f"v_and_b32 v9, 0xffff0000, v5")
            a(f"s_mov_b32 s{sT0}, 0x3db504f3")
            for i in range(4):
                a(f"v_mul_f32 v{6+i}, s{sT0}, v{6+i}")
            a(f"v_cvt_pk_bf16_f32 v4, v6, v7")
            a(f"v_cvt_pk_bf16_f32 v5, v8, v9")
            a(f"v_lshlrev_b32 v6, 16, v4")
            a(f"v_and_b32 v7, 0xffff0000, v4")
            a(f"v_lshlrev_b32 v8, 16, v5")
            a(f"v_and_b32 v9, 0xffff0000, v5")
            a("v_max_f32 v4, v6, v7")
            a("v_max3_f32 v4, v4, v8, v9")
            def xreduce(op):
                a("v_mov_b32 v5, v4")
                a("s_nop 1")
                a("v_permlane32_swap_b32 v4, v5")
                a("s_nop 1")
                a(f"{op} v4, v4, v5")
                a("v_mov_b32 v5, v4")
                a("s_nop 1")
                a("v_permlane16_swap_b32 v4, v5")
                a("s_nop 1")
                a(f"{op} v4, v4, v5")
            xreduce("v_max_f32")
            a(f"s_mov_b32 s{sT0}, 0x3fb8aa3b")
            for i in range(4):
                a(f"v_sub_f32 v{6+i}, v{6+i}, v4")
            for i in range(4):
                a(f"v_mul_f32 v{6+i}, s{sT0}, v{6+i}")
            for i in range(4):
                a(f"v_exp_f32 v{6+i}, v{6+i}")
            a("s_nop 0")
            a("v_add_f32 v4, v6, v7")
            a("v_add_f32 v5, v8, v9")
            a("v_add_f32 v4, v4, v5")
            xreduce("v_add_f32")
            a("v_rcp_f32 v4, v4")
            a("s_nop 0")
            for i in range(4):
                a(f"v_mul_f32 v{6+i}, v4, v{6+i}")
            a(f"v_cvt_pk_bf16_f32 v{PP}, v6, v7")
            a(f"v_cvt_pk_bf16_f32 v{PP+1}, v8, v9")
    if fb and endpub:
        a(f"v_mov_b32 v{VPUB}, {endpub}")
        a(f"buffer_store_dword v{VPUB}, v{VCOFF}, s[{SD}:{SD+3}], 0 offen")
    a("s_nop 7")
    O = KB
    a("s_waitcnt vmcnt(0)")
    for j in range(8):
        tt = TMP + 2 * (j & 3)
        a(f"v_cvt_pk_bf16_f32 v{tt}, v{ACC+4*j}, v{ACC+4*j+1}")
        a(f"v_cvt_pk_bf16_f32 v{tt+1}, v{ACC+4*j+2}, v{ACC+4*j+3}")
        a("s_nop 1")
        a(f"v_mfma_f32_16x16x16_bf16 {vr(O+4*j,4)}, {vr(PP,2)}, {vr(tt,2)}, 0")
    a("s_nop 7")
    a("v_lshrrev_b32 v5, 4, v0")
    a("v_and_b32 v4, 15, v0")
    a("v_lshlrev_b32 v3, 10, v5")
    a("v_lshl_add_u32 v3, v4, 4, v3")
    for t in range(4):
        for vv in range(4):
            a(f"v_cvt_pk_bf16_f32 v{ACC+4*t+vv}, v{O+4*(2*vv)+t}, v{O+4*(2*vv+1)+t}")
        a(f"buffer_store_dwordx4 {vr(ACC+4*t,4)}, v3, s[{SO}:{SO+3}], 0 offen offset:{t*256} {oflags}")
    if stamp:
        a(f"s_mov_b32 s68, s56")
        a(f"s_and_b32 s69, s57, 0xffff")
        a(f"s_mov_b32 s70, 0x10000000")
        a(f"s_mov_b32 s71, 0x20000")
        a("s_waitcnt vmcnt(0)")
        a("s_memrealtime s[42:43]")
        a(f"s_getreg_b32 s72, hwreg(HW_REG_XCC_ID)")
        a(f"s_getreg_b32 s73, hwreg(HW_REG_HW_ID)")
        a("s_waitcnt lgkmcnt(0)")
        a(f"v_mov_b32 v4, s{sStart}")
        a(f"v_mov_b32 v5, s{sStart+1}")
        a(f"v_mov_b32 v6, s42")
        a(f"v_mov_b32 v7, s43")
        a(f"v_mov_b32 v8, s72")
        a(f"v_mov_b32 v9, s73")
        a(f"v_mov_b32 v10, 0")
        a(f"v_mov_b32 v11, 0")
        a(f"s_lshl_b32 s{sT1}, s2, 5")
        a(f"v_mov_b32 v3, 0")
        a("v_cmp_eq_u32 vcc, 0, v0")
        a("s_and_saveexec_b64 s[74:75], vcc")
        a(f"buffer_store_dwordx4 v[4:7], v3, s[68:71], s{sT1} offen")
        a(f"buffer_store_dwordx4 v[8:11], v3, s[68:71], s{sT1} offen offset:16")
        a("s_mov_b64 exec, s[74:75]")
        if stamp == 6:
            a(f"s_lshl_b32 s{sT1}, s2, 8")
            a(f"s_add_u32 s{sT1}, s{sT1}, 0x200000")
            a("v_lshlrev_b32 v3, 2, v0")
            a(f"buffer_store_dword v{VHIST}, v3, s[68:71], s{sT1} offen")
    if helper:
        a("s_endpgm")
        a.label("L_helper")
        a("s_load_dwordx2 s[58:59], s[0:1], 48")
        a(f"s_getreg_b32 s{sT0}, hwreg(HW_REG_XCC_ID, 0, 3)")
        a(f"s_lshl_b32 s{sT0}, s{sT0}, 2")
        a(f"s_add_u32 s{sT0}, s{sT0}, 128")
        a(f"v_mov_b32 v{VT}, 0x40000000")
        a(f"v_lshlrev_b32 v{VROFF}, 2, v0")
        a(f"v_add_u32 v{VGR}, 128, v{VROFF}")
        a(f"v_cmp_gt_u32 vcc, 32, v0")
        a(f"s_nop 0")
        a(f"v_cndmask_b32 v{VROFF}, v{VT}, v{VROFF}, vcc")
        a(f"v_cmp_gt_u32 vcc, 8, v0")
        a(f"s_nop 0")
        a(f"v_cndmask_b32 v{VGR}, v{VT}, v{VGR}, vcc")
        a(f"v_mov_b32 v{VG}, s{sT0}")
        a(f"v_mov_b32 v{VC}, 0")
        a(f"v_cmp_eq_u32 vcc, 0, v0")
        a(f"s_nop 0")
        a(f"v_cndmask_b32 v{VGW}, v{VT}, v{VG}, vcc")
        a(f"v_cndmask_b32 v{VOW}, v{VT}, v{VC}, vcc")
        a(f"s_mov_b32 s{sOwn}, 0")
        a(f"s_mov_b32 s{sCnt}, 0")
        a("s_waitcnt lgkmcnt(0)")
        a(f"s_mov_b32 s{SD}, s{pd}")
        a(f"s_and_b32 s{SD+1}, s{pd+1}, 0xffff")
        a(f"s_mov_b32 s{SD+2}, 256")
        a(f"s_mov_b32 s{SD+3}, 0x20000")
        a.label("L_hloop")
        a(f"buffer_load_dword v{VC}, v{VROFF}, s[{SD}:{SD+3}], 0 offen {rflags}")
        a(f"buffer_load_dword v{VG}, v{VGR}, s[{SD}:{SD+3}], 0 offen {grflags}")
        a("s_waitcnt vmcnt(0)")
        rowsum(VT, VC, (1, 2, 4, 8))
        a(f"v_readlane_b32 s{sC}, v{VT}, 15")
        a(f"v_readlane_b32 s{sT0}, v{VT}, 31")
        a(f"v_readlane_b32 s{sT1}, v{VC}, 0")
        rowsum(VT, VG, (1, 2, 4))
        a(f"s_add_i32 s{sC}, s{sC}, s{sT0}")
        a(f"v_readlane_b32 s{sT0}, v{VT}, 7")
        a(f"s_mov_b32 s{sPrev}, s{sOwn}")
        a(f"s_sub_i32 s{sOwn}, s{sC}, s{sT1}")
        a(f"s_add_i32 s{sT1}, s{sOwn}, s{sPrev}")
        a(f"s_ashr_i32 s{sT0}, s{sT0}, 3")
        a(f"s_ashr_i32 s{sT1}, s{sT1}, 1")
        a(f"s_sub_i32 s{sT0}, s{sT0}, s{sT1}")
        a(f"s_max_i32 s{sT0}, s{sT0}, {-clampv}")
        a(f"s_min_i32 s{sT0}, s{sT0}, {clampv}")
        a(f"v_mov_b32 v{VT}, s{sOwn}")
        a(f"v_mov_b32 v{VPUB}, s{sT0}")
        a(f"buffer_store_dword v{VT}, v{VGW}, s[{SD}:{SD+3}], 0 offen {gsflags}")
        a(f"buffer_store_dword v{VPUB}, v{VOW}, s[{SD}:{SD+3}], 0 offen")
        a(f"s_add_u32 s{sCnt}, s{sCnt}, 1")
        a(f"s_cmp_ge_i32 s{sOwn}, {hthr}")
        a(f"s_cbranch_scc1 L_hdone")
        a(f"s_cmp_lt_u32 s{sCnt}, {hmax}")
        a(f"s_cbranch_scc1 L_hloop")
        a.label("L_hdone")
        if stamp:
            a(f"s_getreg_b32 s{sT0}, hwreg(HW_REG_XCC_ID, 0, 3)")
            a(f"s_lshl_b32 s{sT0}, s{sT0}, 2")
            a(f"s_add_u32 s{sT0}, s{sT0}, 192")
            a(f"v_mov_b32 v{VT}, s{sCnt}")
            a(f"buffer_store_dword v{VT}, v{VOW}, s[{SD}:{SD+3}], s{sT0} offen sc1")
    a.label("L_end")
    a("s_endpgm")
    return wrap(a.text(), ngrid, 64, lds, nv, accum), dict(nwaves=512, nv=nv)

if __name__ == "__main__":
    import json
    kw = json.loads(sys.argv[1]) if len(sys.argv) > 1 else {}
    s, info = gen(**kw)
    print(s)
```

```python
import sys
from asmlib import *

def gen(D=4, flags="nt", eflags="", lds=81920, stamp=0, oflags="sc0 sc1", mode="X", Xb=7, Wb=8, Ws=2, W0=0, X0=-1,
        G=2, L0=4, bias=64, Lmax=12, glob=False, RG=1, endpub=0, rflags="sc1", gsflags="sc1", grflags="sc1",
        fb=True, nlev=4, ldfirst=True, stag=True, repfree=True, stg=0, stgsh=0, xs=None, cols=None, vtouch=False, rot=False, rotlast=28, rotstep=1, filt=0, centre=0, goff=2, par=0, helper=False, clampv=93, hmax=128, hthr=31*256):
    a = Asm()
    nwg = 512
    steps = 128
    VOFFK, VOFFE, VOFFQ = 1, 2, 3
    TMP = 4
    ACC = 12
    QF = 44
    PP = 60
    VHIST, VT = 62, 63
    SC = 64
    VCOFF, VC, VROFF, VPUB = 68, 69, 70, 71
    VGW, VGR, VG, VOW = 72, 73, 74, 75
    KB = 76
    EB = KB + 32 * D
    nv = EB + 4 * D
    assert nv <= 256
    accum = (nv + 3) // 4 * 4
    eb = lambda i: vr(EB + 4 * i, 4)
    SK, SV, SE, SF = 4, 8, 12, 16
    SP, SPE = 20, 24
    sOffK, sOffE, sCnt, sSelLo, sSelHi = 28, 29, 30, 31, 32
    sT0, sT1 = 36, 37
    sStart = 40
    SQ, SO, SD = 60, 64, 88
    sN, sL, sC, sNr, sRep, sOwn, sPrev = 92, 94, 95, 96, 97, 98, 99
    sPh, sLsum, sNl, sRph = 93, 87, 86, 85
    sRepN, sRepN2, sX, sBias = 84, 83, 82, 81
    pq, pk, pv, pe, pf, po, pd = 44, 46, 48, 50, 52, 54, 58
    ngrid = nwg + (8 if helper else 0)
    a(f"s_cmp_ge_u32 s2, {ngrid}")
    a("s_cbranch_scc1 L_end")
    if helper:
        a(f"s_cmp_ge_u32 s2, {nwg}")
        a("s_cbranch_scc1 L_helper")
    if stamp:
        a(f"s_memrealtime s[{sStart}:{sStart+1}]")
    a("s_load_dwordx4 s[44:47], s[0:1], 0")
    a("s_load_dwordx4 s[48:51], s[0:1], 16")
    a("s_load_dwordx4 s[52:55], s[0:1], 32")
    a("s_load_dwordx2 s[58:59], s[0:1], 48")
    if stamp:
        a("s_load_dwordx2 s[56:57], s[0:1], 56")
    a("v_and_b32 v4, 15, v0")
    a("v_lshrrev_b32 v5, 4, v0")
    a(f"v_lshlrev_b32 v{VOFFK}, 11, v5")
    a(f"v_lshl_add_u32 v{VOFFK}, v4, 4, v{VOFFK}")
    a(f"v_lshlrev_b32 v{VOFFE}, 13, v4")
    a(f"v_lshl_add_u32 v{VOFFE}, v5, 4, v{VOFFE}")
    a(f"s_lshl_b32 s{sT0}, s2, 20")
    a(f"s_mov_b32 s{SP+2}, 0x100000")
    a(f"s_mov_b32 s{SP+3}, 0x20000")
    a(f"s_mov_b32 s{SPE+2}, 0x20000")
    a(f"s_mov_b32 s{SPE+3}, 0x20000")
    sTau, sF = 34, 35
    if xs == "table":
        a("s_waitcnt lgkmcnt(0)")
        a(f"s_lshl_b32 s{sT1}, s2, 2")
        a(f"s_add_u32 s{sT1}, s{sT1}, 0x300000")
        a(f"s_add_u32 s78, s56, s{sT1}")
        a(f"s_addc_u32 s79, s57, 0")
        a(f"s_load_dword s{sF}, s[78:79], 0")
        a("s_waitcnt lgkmcnt(0)")
        a(f"s_and_b32 s{sF}, s{sF}, 127")
        a(f"s_mov_b32 s{sTau}, 0")
        a(f"s_lshl_b32 s{sOffK}, s{sF}, 13")
        a(f"s_lshl_b32 s{sOffE}, s{sF}, 6")
    elif cols is not None:
        a(f"s_mov_b32 s{sF}, 0")
        for j, c_ in enumerate(cols):
            if c_:
                a(f"s_bfe_i32 s{sT1}, s2, {hex(j | (1 << 16))}")
                a(f"s_and_b32 s{sT1}, s{sT1}, {c_}")
                a(f"s_xor_b32 s{sF}, s{sF}, s{sT1}")
        a(f"s_mov_b32 s{sTau}, 0")
        a(f"s_lshl_b32 s{sOffK}, s{sF}, 13")
        a(f"s_lshl_b32 s{sOffE}, s{sF}, 6")
    elif xs is not None:
        a(f"s_mov_b32 s{sF}, 0")
        for (sr_, nb, sl_) in xs:
            a(f"s_lshr_b32 s{sT1}, s2, {sr_}")
            a(f"s_and_b32 s{sT1}, s{sT1}, {(1 << nb) - 1}")
            a(f"s_lshl_b32 s{sT1}, s{sT1}, {sl_}")
            a(f"s_xor_b32 s{sF}, s{sF}, s{sT1}")
        a(f"s_and_b32 s{sF}, s{sF}, 127")
        a(f"s_mov_b32 s{sTau}, 0")
        a(f"s_lshl_b32 s{sOffK}, s{sF}, 13")
        a(f"s_lshl_b32 s{sOffE}, s{sF}, 6")
    elif stg:
        a(f"s_lshr_b32 s{sT1}, s2, {stgsh}")
        a(f"s_mul_i32 s{sT1}, s{sT1}, {stg}")
        a(f"s_and_b32 s{sT1}, s{sT1}, 127")
        a(f"s_lshl_b32 s{sOffK}, s{sT1}, 13")
        a(f"s_lshl_b32 s{sOffE}, s{sT1}, 6")
    else:
        a(f"s_mov_b32 s{sOffK}, 0")
        a(f"s_mov_b32 s{sOffE}, 0")
    a("s_waitcnt lgkmcnt(0)")
    a(f"s_add_u32 s{SP}, s{pk}, s{sT0}")
    a(f"s_addc_u32 s{SP+1}, s{pk+1}, 0")
    a(f"s_and_b32 s{SP+1}, s{SP+1}, 0xffff")
    a(f"s_mov_b32 s{SPE}, s{pe}")
    a(f"s_and_b32 s{SPE+1}, s{pe+1}, 0xffff")

    lab = [0]
    def loads(b, Wv):
        if Wv:
            a(f"s_waitcnt vmcnt({Wv-1})")
        a(f"buffer_load_dwordx4 {eb(b)}, v{VOFFE}, s[{SPE}:{SPE+3}], s{sOffE} offen {eflags}")
        for i in range(8):
            if Wv:
                a(f"s_waitcnt vmcnt({Wv-1})")
            a(f"buffer_load_dwordx4 {vr(KB+32*b+4*i,4)}, v{VOFFK}, s[{SP}:{SP+3}], s{sOffK} offen offset:{i*256} {flags}")
    def advance():
        if xs is not None or cols is not None:
            a(f"s_add_u32 s{sTau}, s{sTau}, 1")
            a(f"s_and_b32 s{sTau}, s{sTau}, 127")
            a(f"s_xor_b32 s{sOffE}, s{sTau}, s{sF}")
            a(f"s_lshl_b32 s{sOffK}, s{sOffE}, 13")
            a(f"s_lshl_b32 s{sOffE}, s{sOffE}, 6")
            return
        a(f"s_add_u32 s{sOffK}, s{sOffK}, 8192")
        a(f"s_and_b32 s{sOffK}, s{sOffK}, 0xfffff")
        a(f"s_add_u32 s{sOffE}, s{sOffE}, 64")
        a(f"s_and_b32 s{sOffE}, s{sOffE}, 0x1fff")
    def rowsum(dst, src, shifts):
        first = True
        for sh in shifts:
            s_ = src if first else dst
            a(f"v_add_u32_dpp v{dst}, v{s_}, v{s_} row_shr:{sh} row_mask:0xf bank_mask:0xf bound_ctrl:0")
            a("s_nop 1")
            first = False

    def issue(b):
        lab[0] += 1
        L = lab[0]
        if mode == "X":
            if glob and repfree:
                for ph_ in (b, (b + 3) & 3):
                    a(f"s_cmp_eq_u32 s{sRep}, {ph_ + 1}")
                    a(f"s_cbranch_scc1 L_go{L}")
            a(f"s_waitcnt vmcnt({Xb+3})")
            for lev in (3, 2, 1):
                a(f"s_cmp_ge_u32 s{sL}, {4*lev-b}")
                a(f"s_cbranch_scc1 L_go{L}")
                a(f"s_waitcnt vmcnt({Xb+lev-1})")
            a.label(f"L_go{L}")
        if fb and b == 2:
            rowsum(VT, VC, (1, 2, 4, 8))
            a(f"v_readlane_b32 s{sC}, v{VT}, 15")
            a(f"v_readlane_b32 s{sT0}, v{VT}, 31")
            a(f"s_mul_i32 s{sT1}, s{sNr}, 31")
            a(f"s_add_i32 s{sC}, s{sC}, s{sT0}")
            a(f"s_sub_i32 s{sT0}, s{sT1}, s{sC}")
            if stamp == 6:
                a(f"s_lshr_b32 m0, s{sNr}, 2")
                a(f"s_nop 0")
                a(f"v_writelane_b32 v{VHIST}, s{sT0}, m0")
            if par:
                a(f"s_sub_i32 s{sT0}, s{sT0}, s{sBias}")
            else:
                a(f"s_sub_i32 s{sT0}, s{sT0}, {bias}")
            a(f"s_mul_i32 s{sT0}, s{sT0}, {G}")
            a(f"s_ashr_i32 s{sT0}, s{sT0}, 6")
            a(f"s_sub_i32 s{sT0}, {L0}, s{sT0}")
            a(f"s_max_i32 s{sT0}, s{sT0}, 0")
            a(f"s_min_i32 s{sL}, s{sT0}, {Lmax}")
            if glob or rot:
                a(f"v_readlane_b32 s{sT0}, v{VC}, 0")
                a(f"s_nop 0")
                a(f"s_sub_i32 s{sLsum}, s{sC}, s{sT0}")
                a(f"s_mov_b32 s{sNl}, s{sNr}")
        if fb and rot:
            a(f"s_cmp_eq_u32 s{sN}, s{sRepN2}")
            a(f"s_cbranch_scc0 L_nq{L}")
            rowsum(VT, VG, (1, 2, 4))
            a(f"v_readlane_b32 s{sT0}, v{VT}, 7")
            a(f"v_readlane_b32 s{sT1}, v{VG}, s{sX}")
            a(f"s_ashr_i32 s{sT0}, s{sT0}, 3")
            a(f"s_add_i32 s{sT1}, s{sT1}, s{sOwn}")
            a(f"s_ashr_i32 s{sT1}, s{sT1}, 1")
            a(f"s_sub_i32 s{sT0}, s{sT0}, s{sT1}")
            if goff != 2:
                a(f"s_mul_i32 s{sT0}, s{sT0}, {goff}")
                a(f"s_ashr_i32 s{sT0}, s{sT0}, 1")
            if filt:
                a(f"v_readlane_b32 s{sT1}, v{VC}, 0")
                a(f"s_add_i32 s{sT0}, s{sT0}, {centre}")
                a(f"s_sub_i32 s{sT0}, s{sT0}, s{sT1}")
                a(f"s_ashr_i32 s{sT0}, s{sT0}, {filt}")
                a(f"s_add_i32 s{sT0}, s{sT0}, s{sT1}")
            a(f"s_max_i32 s{sT0}, s{sT0}, {-clampv}")
            a(f"s_min_i32 s{sT0}, s{sT0}, {clampv}")
            a(f"v_mov_b32 v{VT}, s{sT0}")
            a(f"buffer_store_dword v{VT}, v{VOW}, s[{SD}:{SD+3}], 0 offen")
            a.label(f"L_nq{L}")
            a(f"s_cmp_eq_u32 s{sN}, s{sRepN}")
            a(f"s_cbranch_scc0 L_nr{L}")
            a(f"s_sub_i32 s{sOwn}, s{sN}, s{sNl}")
            a(f"s_mul_i32 s{sOwn}, s{sOwn}, 31")
            a(f"s_add_i32 s{sOwn}, s{sOwn}, s{sLsum}")
            a(f"v_mov_b32 v{VT}, s{sOwn}")
            a(f"buffer_load_dword v{VG}, v{VGR}, s[{SD}:{SD+3}], 0 offen {grflags}")
            a(f"buffer_store_dword v{VT}, v{VGW}, s[{SD}:{SD+3}], 0 offen {gsflags}")
            a.label(f"L_nr{L}")
        if fb and glob:
            a(f"s_cmp_eq_u32 s{sRep}, {((b + 2) & 3) + 1}")
            a(f"s_cbranch_scc0 L_nq{L}")
            if mode == "F":
                a("s_waitcnt vmcnt(19)")
            rowsum(VT, VG, (1, 2, 4))
            a(f"v_readlane_b32 s{sT0}, v{VT}, 7")
            a(f"s_add_i32 s{sT1}, s{sOwn}, s{sPrev}")
            a(f"s_ashr_i32 s{sT0}, s{sT0}, 3")
            a(f"s_ashr_i32 s{sT1}, s{sT1}, 1")
            a(f"s_sub_i32 s{sT0}, s{sT0}, s{sT1}")
            a(f"v_mov_b32 v{VT}, s{sT0}")
            a(f"buffer_store_dword v{VT}, v{VOW}, s[{SD}:{SD+3}], 0 offen")
            a.label(f"L_nq{L}")
            a(f"s_cmp_eq_u32 s{sRep}, {b + 1}")
            a(f"s_cbranch_scc0 L_nr{L}")
            if RG > 1:
                a(f"s_lshr_b32 s{sT0}, s{sN}, 2")
                a(f"s_add_u32 s{sT0}, s{sT0}, s{sRph}")
                a(f"s_and_b32 s{sT0}, s{sT0}, {RG-1}")
                a(f"s_cbranch_scc1 L_nr{L}")
            a(f"s_mov_b32 s{sPrev}, s{sOwn}")
            a(f"s_sub_i32 s{sOwn}, s{sN}, s{sNl}")
            a(f"s_mul_i32 s{sOwn}, s{sOwn}, 31")
            a(f"s_add_i32 s{sOwn}, s{sOwn}, s{sLsum}")
            a(f"v_mov_b32 v{VT}, s{sOwn}")
            a(f"buffer_load_dword v{VG}, v{VGR}, s[{SD}:{SD+3}], 0 offen {grflags}")
            a(f"buffer_store_dword v{VT}, v{VGW}, s[{SD}:{SD+3}], 0 offen {gsflags}")
            a.label(f"L_nr{L}")
        if fb:
            if stag:
                a(f"s_cmp_eq_u32 s{sPh}, {b}")
                a(f"s_cbranch_scc0 L_np{L}")
                a(f"v_mov_b32 v{VPUB}, s{sN}")
                a(f"buffer_store_dword v{VPUB}, v{VCOFF}, s[{SD}:{SD+3}], 0 offen")
                a.label(f"L_np{L}")
            elif b == 0:
                a(f"v_mov_b32 v{VPUB}, s{sN}")
                a(f"buffer_store_dword v{VPUB}, v{VCOFF}, s[{SD}:{SD+3}], 0 offen")
            if b == 0:
                a(f"s_mov_b32 s{sNr}, s{sN}")
                a(f"buffer_load_dword v{VC}, v{VROFF}, s[{SD}:{SD+3}], 0 offen {rflags}")
        a(f"s_add_u32 s{sN}, s{sN}, 1")
        if mode == "F":
            if glob and repfree:
                for ph_ in (b, (b + 3) & 3):
                    a(f"s_cmp_eq_u32 s{sRep}, {ph_ + 1}")
                    a(f"s_cbranch_scc1 L_fr{L}")
            a(f"s_cmp_ge_u32 s{sL}, {8-b}")
            a(f"s_cbranch_scc1 L_hi{L}")
            a(f"s_cmp_ge_u32 s{sL}, {4-b}")
            a(f"s_cbranch_scc1 L_ka{L}")
            loads(b, Wb)
            a(f"s_branch L_dn{L}")
            a.label(f"L_ka{L}")
            loads(b, Wb + Ws)
            a(f"s_branch L_dn{L}")
            a.label(f"L_hi{L}")
            a(f"s_cmp_ge_u32 s{sL}, {12-b}")
            a(f"s_cbranch_scc1 L_kb{L}")
            loads(b, Wb + 2 * Ws)
            a(f"s_branch L_dn{L}")
            a.label(f"L_kb{L}")
            loads(b, Wb + 3 * Ws)
            if glob and repfree:
                a(f"s_branch L_dn{L}")
                a.label(f"L_fr{L}")
                loads(b, 0)
            a.label(f"L_dn{L}")
        else:
            loads(b, 0)
        advance()

    def consume(b, isV):
        def perms(j):
            t = TMP + 4 * (j & 1)
            p = j >> 1
            sel = sSelHi if (j & 1) else sSelLo
            for vv in range(4):
                r0 = KB + 32 * b + 4 * (2 * vv) + p
                r1 = KB + 32 * b + 4 * (2 * vv + 1) + p
                a(f"v_perm_b32 v{t+vv}, v{r1}, v{r0}, s{sel}")
        def mf(j):
            t = TMP + 4 * (j & 1)
            if isV:
                a(f"v_mfma_f32_16x16x32_bf16 {vr(ACC+4*j,4)}, {eb(b)}, {vr(t,4)}, {vr(ACC+4*j,4)}")
            else:
                a(f"v_mfma_f32_16x16x32_bf16 {vr(ACC+4*j,4)}, {vr(t,4)}, {eb(b)}, {vr(ACC+4*j,4)}")
        perms(0)
        for j in range(8):
            if j + 1 < 8:
                perms(j + 1)
            else:
                a("s_nop 1")
            mf(j)

    for b in range(D):
        if X0 >= 0 and b > 0:
            a(f"s_waitcnt vmcnt({X0})")
        loads(b, W0)
        advance()
        if b == 0:
            a(f"v_lshlrev_b32 v{VOFFQ}, 8, v4")
            a(f"v_lshl_add_u32 v{VOFFQ}, v5, 6, v{VOFFQ}")
            for (S, p) in ((SK, pk), (SV, pv)):
                a(f"s_add_u32 s{S}, s{p}, s{sT0}")
                a(f"s_addc_u32 s{S+1}, s{p+1}, 0")
                a(f"s_and_b32 s{S+1}, s{S+1}, 0xffff")
                a(f"s_mov_b32 s{S+2}, 0x100000")
                a(f"s_mov_b32 s{S+3}, 0x20000")
            a(f"s_mov_b32 s{SF}, s{pf}")
            a(f"s_and_b32 s{SF+1}, s{pf+1}, 0xffff")
            a(f"s_mov_b32 s{SF+2}, 0x20000")
            a(f"s_mov_b32 s{SF+3}, 0x20000")
            a(f"s_lshl_b32 s{sT0}, s2, 12")
            for (S, p) in ((SQ, pq), (SO, po)):
                a(f"s_add_u32 s{S}, s{p}, s{sT0}")
                a(f"s_addc_u32 s{S+1}, s{p+1}, 0")
                a(f"s_and_b32 s{S+1}, s{S+1}, 0xffff")
                a(f"s_mov_b32 s{S+2}, 0x1000")
                a(f"s_mov_b32 s{S+3}, 0x20000")
            for t in range(4):
                a(f"buffer_load_dwordx4 {vr(QF+4*t,4)}, v{VOFFQ}, s[{SQ}:{SQ+3}], 0 offen offset:{t*16}")
            if vtouch:
                a(f"buffer_load_dword v{VT}, off, s[{SV}:{SV+3}], 0 nt")
                a(f"buffer_load_dword v{VT}, off, s[{SF}:{SF+3}], 0")
    a(f"s_mov_b32 s{sSelLo}, 0x05040100")
    a(f"s_mov_b32 s{sSelHi}, 0x07060302")
    a(f"s_mov_b32 s{sN}, 0")
    a(f"s_mov_b32 s{sNr}, 0")
    a(f"s_mov_b32 s{sL}, {L0}")
    if fb:
        a(f"s_mov_b32 s{SD}, s{pd}")
        a(f"s_and_b32 s{SD+1}, s{pd+1}, 0xffff")
        a(f"s_mov_b32 s{SD+2}, 256")
        a(f"s_mov_b32 s{SD+3}, 0x20000")
        a(f"s_lshr_b32 s{sT0}, s2, 3")
        a(f"s_and_b32 s{sPh}, s{sT0}, 3")
        a(f"s_sub_u32 s{sT1}, s{sT0}, 1")
        a(f"s_lshl_b32 s{sT0}, s{sT0}, 2")
        a(f"s_cmp_lt_u32 s{sT1}, 31")
        a(f"s_cselect_b32 s{sT0}, s{sT0}, 0x40000000")
        a(f"v_mov_b32 v{VCOFF}, 0x40000000")
        a(f"v_mov_b32 v{VC}, s{sT0}")
        a(f"v_cmp_eq_u32 vcc, 0, v0")
        a(f"s_nop 0")
        a(f"v_cndmask_b32 v{VCOFF}, v{VCOFF}, v{VC}, vcc")
        a(f"v_lshlrev_b32 v{VROFF}, 2, v0")
        a(f"v_mov_b32 v{VC}, 0x40000000")
        a(f"v_cmp_gt_u32 vcc, 32, v0")
        a(f"s_nop 0")
        a(f"v_cndmask_b32 v{VROFF}, v{VC}, v{VROFF}, vcc")
        if par:
            a(f"s_getreg_b32 s{sT0}, hwreg(HW_REG_XCC_ID, 0, 1)")
            a(f"s_mul_i32 s{sT0}, s{sT0}, {2 * par}")
            a(f"s_sub_i32 s{sBias}, {bias + par}, s{sT0}")
        if rot:
            a(f"s_getreg_b32 s{sX}, hwreg(HW_REG_XCC_ID, 0, 3)")
            a(f"s_lshr_b32 s{sT0}, s2, 3")
            a(f"s_sub_u32 s{sT1}, s{sT0}, 1")
            a(f"s_lshl_b32 s{sT0}, s{sT0}, 3")
            a(f"s_add_u32 s{sT0}, s{sT0}, s{sX}")
            a(f"s_cmp_lt_u32 s{sT1}, {rotlast}")
            a(f"s_cselect_b32 s{sRepN}, s{sT0}, 0x7fff0000")
            if rotstep > 1:
                a(f"s_lshr_b32 s{sT1}, s2, 3")
                a(f"s_and_b32 s{sT1}, s{sT1}, {rotstep-1}")
                a(f"s_cselect_b32 s{sRepN}, 0x7fff0000, s{sRepN}")
            a(f"s_add_u32 s{sRepN2}, s{sRepN}, 2")
            a(f"s_mov_b32 s{sOwn}, 0")
            a(f"s_mov_b32 s{sLsum}, 0")
            a(f"s_mov_b32 s{sNl}, 0")
            a(f"s_lshl_b32 s{sT0}, s{sX}, 2")
            a(f"s_add_u32 s{sT0}, s{sT0}, 128")
            a(f"v_mov_b32 v{VG}, s{sT0}")
            a(f"v_cmp_eq_u32 vcc, 0, v0")
            a(f"s_nop 0")
            a(f"v_cndmask_b32 v{VGW}, v{VC}, v{VG}, vcc")
            a(f"v_mov_b32 v{VG}, 0")
            a(f"s_nop 0")
            a(f"v_cndmask_b32 v{VOW}, v{VC}, v{VG}, vcc")
            a(f"v_lshlrev_b32 v{VGR}, 2, v0")
            a(f"v_add_u32 v{VGR}, 128, v{VGR}")
            a(f"v_cmp_gt_u32 vcc, 8, v0")
            a(f"s_nop 0")
            a(f"v_cndmask_b32 v{VGR}, v{VC}, v{VGR}, vcc")
        if glob:
            a(f"s_and_b32 s{sT0}, s2, 3")
            a(f"s_add_u32 s{sT0}, s{sT0}, 1")
            a(f"s_cmp_lt_u32 s2, 8")
            a(f"s_cselect_b32 s{sRep}, s{sT0}, 0")
            a(f"s_mov_b32 s{sLsum}, 0")
            a(f"s_mov_b32 s{sNl}, 0")
            a(f"s_lshr_b32 s{sRph}, s2, 2")
            a(f"s_mov_b32 s{sOwn}, 0")
            a(f"s_mov_b32 s{sPrev}, 0")
            a(f"s_and_b32 s{sT0}, s2, 7")
            a(f"s_lshl_b32 s{sT0}, s{sT0}, 2")
            a(f"s_add_u32 s{sT0}, s{sT0}, 128")
            a(f"v_mov_b32 v{VG}, s{sT0}")
            a(f"v_cmp_eq_u32 vcc, 0, v0")
            a(f"s_nop 0")
            a(f"v_cndmask_b32 v{VGW}, v{VC}, v{VG}, vcc")
            a(f"v_mov_b32 v{VG}, 0")
            a(f"s_nop 0")
            a(f"v_cndmask_b32 v{VOW}, v{VC}, v{VG}, vcc")
            a(f"v_lshlrev_b32 v{VGR}, 2, v0")
            a(f"v_add_u32 v{VGR}, 128, v{VGR}")
            a(f"v_cmp_gt_u32 vcc, 8, v0")
            a(f"s_nop 0")
            a(f"v_cndmask_b32 v{VGR}, v{VC}, v{VGR}, vcc")
        a(f"v_mov_b32 v{VC}, 0")
    for i in range(32):
        a(f"v_mov_b32 v{ACC+i}, 0")
    if stamp == 6:
        a(f"v_mov_b32 v{VHIST}, 0")
    for ph in range(2):
        last = ph == 1
        a(f"s_mov_b32 s{sCnt}, {steps // D}")
        a.label(f"L_loop{ph}")
        a(f"s_cmp_eq_u32 s{sCnt}, 1")
        a(f"s_cbranch_scc0 L_nosw{ph}")
        if last:
            a(f"s_mov_b32 s{SP+2}, 0")
            a(f"s_mov_b32 s{SPE+2}, 0")
        else:
            for i in range(3):
                a(f"s_mov_b32 s{SP+i}, s{SV+i}")
                a(f"s_mov_b32 s{SPE+i}, s{SF+i}")
        a.label(f"L_nosw{ph}")
        for b in range(D):
            a(f"s_waitcnt vmcnt({(D-1)*9})")
            consume(b, ph == 1)
            issue(b)
        a(f"s_sub_u32 s{sCnt}, s{sCnt}, 1")
        a(f"s_cmp_lg_u32 s{sCnt}, 0")
        a(f"s_cbranch_scc1 L_loop{ph}")
        if ph == 0:
            a("s_nop 7")
            for t in range(4):
                tt = TMP + 4 * (t & 1)
                for vv in range(4):
                    a(f"v_cvt_pk_bf16_f32 v{tt+vv}, v{ACC+4*(2*vv)+t}, v{ACC+4*(2*vv+1)+t}")
                a("s_nop 1")
                c = "0" if t == 0 else vr(SC, 4)
                a(f"v_mfma_f32_16x16x32_bf16 {vr(SC,4)}, {vr(tt,4)}, {vr(QF+4*t,4)}, {c}")
            for i in range(32):
                a(f"v_mov_b32 v{ACC+i}, 0")
            a(f"v_cvt_pk_bf16_f32 v4, v{SC}, v{SC+1}")
            a(f"v_cvt_pk_bf16_f32 v5, v{SC+2}, v{SC+3}")
            a(f"v_lshlrev_b32 v6, 16, v4")
            a(f"v_and_b32 v7, 0xffff0000, v4")
            a(f"v_lshlrev_b32 v8, 16, v5")
            a(f"v_and_b32 v9, 0xffff0000, v5")
            a(f"s_mov_b32 s{sT0}, 0x3db504f3")
            for i in range(4):
                a(f"v_mul_f32 v{6+i}, s{sT0}, v{6+i}")
            a(f"v_cvt_pk_bf16_f32 v4, v6, v7")
            a(f"v_cvt_pk_bf16_f32 v5, v8, v9")
            a(f"v_lshlrev_b32 v6, 16, v4")
            a(f"v_and_b32 v7, 0xffff0000, v4")
            a(f"v_lshlrev_b32 v8, 16, v5")
            a(f"v_and_b32 v9, 0xffff0000, v5")
            a("v_max_f32 v4, v6, v7")
            a("v_max3_f32 v4, v4, v8, v9")
            def xreduce(op):
                a("v_mov_b32 v5, v4")
                a("s_nop 1")
                a("v_permlane32_swap_b32 v4, v5")
                a("s_nop 1")
                a(f"{op} v4, v4, v5")
                a("v_mov_b32 v5, v4")
                a("s_nop 1")
                a("v_permlane16_swap_b32 v4, v5")
                a("s_nop 1")
                a(f"{op} v4, v4, v5")
            xreduce("v_max_f32")
            a(f"s_mov_b32 s{sT0}, 0x3fb8aa3b")
            for i in range(4):
                a(f"v_sub_f32 v{6+i}, v{6+i}, v4")
            for i in range(4):
                a(f"v_mul_f32 v{6+i}, s{sT0}, v{6+i}")
            for i in range(4):
                a(f"v_exp_f32 v{6+i}, v{6+i}")
            a("s_nop 0")
            a("v_add_f32 v4, v6, v7")
            a("v_add_f32 v5, v8, v9")
            a("v_add_f32 v4, v4, v5")
            xreduce("v_add_f32")
            a("v_rcp_f32 v4, v4")
            a("s_nop 0")
            for i in range(4):
                a(f"v_mul_f32 v{6+i}, v4, v{6+i}")
            a(f"v_cvt_pk_bf16_f32 v{PP}, v6, v7")
            a(f"v_cvt_pk_bf16_f32 v{PP+1}, v8, v9")
    if fb and endpub:
        a(f"v_mov_b32 v{VPUB}, {endpub}")
        a(f"buffer_store_dword v{VPUB}, v{VCOFF}, s[{SD}:{SD+3}], 0 offen")
    a("s_nop 7")
    O = KB
    a("s_waitcnt vmcnt(0)")
    for j in range(8):
        tt = TMP + 2 * (j & 3)
        a(f"v_cvt_pk_bf16_f32 v{tt}, v{ACC+4*j}, v{ACC+4*j+1}")
        a(f"v_cvt_pk_bf16_f32 v{tt+1}, v{ACC+4*j+2}, v{ACC+4*j+3}")
        a("s_nop 1")
        a(f"v_mfma_f32_16x16x16_bf16 {vr(O+4*j,4)}, {vr(PP,2)}, {vr(tt,2)}, 0")
    a("s_nop 7")
    a("v_lshrrev_b32 v5, 4, v0")
    a("v_and_b32 v4, 15, v0")
    a("v_lshlrev_b32 v3, 10, v5")
    a("v_lshl_add_u32 v3, v4, 4, v3")
    for t in range(4):
        for vv in range(4):
            a(f"v_cvt_pk_bf16_f32 v{ACC+4*t+vv}, v{O+4*(2*vv)+t}, v{O+4*(2*vv+1)+t}")
        a(f"buffer_store_dwordx4 {vr(ACC+4*t,4)}, v3, s[{SO}:{SO+3}], 0 offen offset:{t*256} {oflags}")
    if stamp:
        a(f"s_mov_b32 s68, s56")
        a(f"s_and_b32 s69, s57, 0xffff")
        a(f"s_mov_b32 s70, 0x10000000")
        a(f"s_mov_b32 s71, 0x20000")
        a("s_waitcnt vmcnt(0)")
        a("s_memrealtime s[42:43]")
        a(f"s_getreg_b32 s72, hwreg(HW_REG_XCC_ID)")
        a(f"s_getreg_b32 s73, hwreg(HW_REG_HW_ID)")
        a("s_waitcnt lgkmcnt(0)")
        a(f"v_mov_b32 v4, s{sStart}")
        a(f"v_mov_b32 v5, s{sStart+1}")
        a(f"v_mov_b32 v6, s42")
        a(f"v_mov_b32 v7, s43")
        a(f"v_mov_b32 v8, s72")
        a(f"v_mov_b32 v9, s73")
        a(f"v_mov_b32 v10, 0")
        a(f"v_mov_b32 v11, 0")
        a(f"s_lshl_b32 s{sT1}, s2, 5")
        a(f"v_mov_b32 v3, 0")
        a("v_cmp_eq_u32 vcc, 0, v0")
        a("s_and_saveexec_b64 s[74:75], vcc")
        a(f"buffer_store_dwordx4 v[4:7], v3, s[68:71], s{sT1} offen")
        a(f"buffer_store_dwordx4 v[8:11], v3, s[68:71], s{sT1} offen offset:16")
        a("s_mov_b64 exec, s[74:75]")
        if stamp == 6:
            a(f"s_lshl_b32 s{sT1}, s2, 8")
            a(f"s_add_u32 s{sT1}, s{sT1}, 0x200000")
            a("v_lshlrev_b32 v3, 2, v0")
            a(f"buffer_store_dword v{VHIST}, v3, s[68:71], s{sT1} offen")
    if helper:
        a("s_endpgm")
        a.label("L_helper")
        a("s_load_dwordx2 s[58:59], s[0:1], 48")
        a(f"s_getreg_b32 s{sT0}, hwreg(HW_REG_XCC_ID, 0, 3)")
        a(f"s_lshl_b32 s{sT0}, s{sT0}, 2")
        a(f"s_add_u32 s{sT0}, s{sT0}, 128")
        a(f"v_mov_b32 v{VT}, 0x40000000")
        a(f"v_lshlrev_b32 v{VROFF}, 2, v0")
        a(f"v_add_u32 v{VGR}, 128, v{VROFF}")
        a(f"v_cmp_gt_u32 vcc, 32, v0")
        a(f"s_nop 0")
        a(f"v_cndmask_b32 v{VROFF}, v{VT}, v{VROFF}, vcc")
        a(f"v_cmp_gt_u32 vcc, 8, v0")
        a(f"s_nop 0")
        a(f"v_cndmask_b32 v{VGR}, v{VT}, v{VGR}, vcc")
        a(f"v_mov_b32 v{VG}, s{sT0}")
        a(f"v_mov_b32 v{VC}, 0")
        a(f"v_cmp_eq_u32 vcc, 0, v0")
        a(f"s_nop 0")
        a(f"v_cndmask_b32 v{VGW}, v{VT}, v{VG}, vcc")
        a(f"v_cndmask_b32 v{VOW}, v{VT}, v{VC}, vcc")
        a(f"s_mov_b32 s{sOwn}, 0")
        a(f"s_mov_b32 s{sCnt}, 0")
        a("s_waitcnt lgkmcnt(0)")
        a(f"s_mov_b32 s{SD}, s{pd}")
        a(f"s_and_b32 s{SD+1}, s{pd+1}, 0xffff")
        a(f"s_mov_b32 s{SD+2}, 256")
        a(f"s_mov_b32 s{SD+3}, 0x20000")
        a.label("L_hloop")
        a(f"buffer_load_dword v{VC}, v{VROFF}, s[{SD}:{SD+3}], 0 offen {rflags}")
        a(f"buffer_load_dword v{VG}, v{VGR}, s[{SD}:{SD+3}], 0 offen {grflags}")
        a("s_waitcnt vmcnt(0)")
        rowsum(VT, VC, (1, 2, 4, 8))
        a(f"v_readlane_b32 s{sC}, v{VT}, 15")
        a(f"v_readlane_b32 s{sT0}, v{VT}, 31")
        a(f"v_readlane_b32 s{sT1}, v{VC}, 0")
        rowsum(VT, VG, (1, 2, 4))
        a(f"s_add_i32 s{sC}, s{sC}, s{sT0}")
        a(f"v_readlane_b32 s{sT0}, v{VT}, 7")
        a(f"s_mov_b32 s{sPrev}, s{sOwn}")
        a(f"s_sub_i32 s{sOwn}, s{sC}, s{sT1}")
        a(f"s_add_i32 s{sT1}, s{sOwn}, s{sPrev}")
        a(f"s_ashr_i32 s{sT0}, s{sT0}, 3")
        a(f"s_ashr_i32 s{sT1}, s{sT1}, 1")
        a(f"s_sub_i32 s{sT0}, s{sT0}, s{sT1}")
        a(f"s_max_i32 s{sT0}, s{sT0}, {-clampv}")
        a(f"s_min_i32 s{sT0}, s{sT0}, {clampv}")
        a(f"v_mov_b32 v{VT}, s{sOwn}")
        a(f"v_mov_b32 v{VPUB}, s{sT0}")
        a(f"buffer_store_dword v{VT}, v{VGW}, s[{SD}:{SD+3}], 0 offen {gsflags}")
        a(f"buffer_store_dword v{VPUB}, v{VOW}, s[{SD}:{SD+3}], 0 offen")
        a(f"s_add_u32 s{sCnt}, s{sCnt}, 1")
        a(f"s_cmp_ge_i32 s{sOwn}, {hthr}")
        a(f"s_cbranch_scc1 L_hdone")
        a(f"s_cmp_lt_u32 s{sCnt}, {hmax}")
        a(f"s_cbranch_scc1 L_hloop")
        a.label("L_hdone")
        if stamp:
            a(f"s_getreg_b32 s{sT0}, hwreg(HW_REG_XCC_ID, 0, 3)")
            a(f"s_lshl_b32 s{sT0}, s{sT0}, 2")
            a(f"s_add_u32 s{sT0}, s{sT0}, 192")
            a(f"v_mov_b32 v{VT}, s{sCnt}")
            a(f"buffer_store_dword v{VT}, v{VOW}, s[{SD}:{SD+3}], s{sT0} offen sc1")
    a.label("L_end")
    a("s_endpgm")
    return wrap(a.text(), ngrid, 64, lds, nv, accum), dict(nwaves=512, nv=nv)

if __name__ == "__main__":
    import json
    kw = json.loads(sys.argv[1]) if len(sys.argv) > 1 else {}
    s, info = gen(**kw)
    print(s)
```

```python
import sys
from asmlib import *

def gen(D=4, flags="nt", eflags="", lds=81920, stamp=0, oflags="sc0 sc1", mode="X", Xb=7, Wb=8, Ws=2, W0=0, X0=-1,
        G=2, L0=4, bias=64, Lmax=12, glob=False, RG=1, endpub=0, rflags="sc1", gsflags="sc1", grflags="sc1",
        fb=True, nlev=4, ldfirst=True, stag=True, repfree=True, stg=0, stgsh=0, xs=None, cols=None, vtouch=False, rot=False, rotlast=28, rotstep=1, filt=0, centre=0, goff=2, par=0, helper=False, clampv=93, hmax=128, hthr=31*256, gp=3, mat=None, tail=0, endpos=0, openk=0):
    a = Asm()
    nwg = 512
    steps = 128
    VOFFK, VOFFE, VOFFQ = 1, 2, 3
    TMP = 4
    ACC = 12
    QF = 44
    PP = 60
    VHIST, VT = 62, 63
    SC = 64
    VCOFF, VC, VROFF, VPUB = 68, 69, 70, 71
    VGW, VGR, VG, VOW = 72, 73, 74, 75
    KB = 76
    EB = KB + 32 * D
    nv = EB + 4 * D
    VKA, VEA = nv, nv + 1
    if mat is not None:
        nv += 2
    assert nv <= 256
    accum = (nv + 3) // 4 * 4
    eb = lambda i: vr(EB + 4 * i, 4)
    SK, SV, SE, SF = 4, 8, 12, 16
    SP, SPE = 20, 24
    sOffK, sOffE, sCnt, sSelLo, sSelHi = 28, 29, 30, 31, 32
    sT0, sT1 = 36, 37
    sStart = 40
    SQ, SO, SD = 60, 64, 88
    sN, sL, sC, sNr, sRep, sOwn, sPrev = 92, 94, 95, 96, 97, 98, 99
    sPh, sLsum, sNl, sRph = 93, 87, 86, 85
    sRepN, sRepN2, sX, sBias = 84, 83, 82, 81
    pq, pk, pv, pe, pf, po, pd = 44, 46, 48, 50, 52, 54, 58
    ngrid = nwg + (8 if helper else 0)
    a(f"s_cmp_ge_u32 s2, {ngrid}")
    a("s_cbranch_scc1 L_end")
    if helper:
        a(f"s_cmp_ge_u32 s2, {nwg}")
        a("s_cbranch_scc1 L_helper")
    if stamp:
        a(f"s_memrealtime s[{sStart}:{sStart+1}]")
    a("s_load_dwordx4 s[44:47], s[0:1], 0")
    a("s_load_dwordx4 s[48:51], s[0:1], 16")
    a("s_load_dwordx4 s[52:55], s[0:1], 32")
    a("s_load_dwordx2 s[58:59], s[0:1], 48")
    if stamp:
        a("s_load_dwordx2 s[56:57], s[0:1], 56")
    a("v_and_b32 v4, 15, v0")
    a("v_lshrrev_b32 v5, 4, v0")
    if mat is None:
        a(f"v_lshlrev_b32 v{VOFFK}, {gp + 8}, v5")
        a(f"v_lshl_add_u32 v{VOFFK}, v4, 4, v{VOFFK}")
        a(f"v_lshlrev_b32 v{VOFFE}, 13, v4")
        a(f"v_lshl_add_u32 v{VOFFE}, v5, {gp + 1}, v{VOFFE}")
    a(f"s_lshl_b32 s{sT0}, s2, 20")
    a(f"s_mov_b32 s{SP+2}, 0x100000")
    a(f"s_mov_b32 s{SP+3}, 0x20000")
    a(f"s_mov_b32 s{SPE+2}, 0x20000")
    a(f"s_mov_b32 s{SPE+3}, 0x20000")
    sTau, sF = 34, 35
    def tile_offsets(src):
        if gp == 3:
            a(f"s_lshl_b32 s{sOffK}, s{src}, 13")
            a(f"s_lshl_b32 s{sOffE}, s{src}, 6")
            return
        a(f"s_and_b32 s{sOffK}, s{src}, {(1 << (gp - 3)) - 1}")
        a(f"s_lshr_b32 s{sOffE}, s{src}, {gp - 3}")
        a(f"s_lshl_b32 s{sOffE}, s{sOffE}, {gp - 1}")
        a(f"s_or_b32 s{sOffE}, s{sOffE}, s{sOffK}")
        a(f"s_lshl_b32 s{sOffK}, s{sOffE}, 11")
        a(f"s_lshl_b32 s{sOffE}, s{sOffE}, 4")
    sM = 68
    def mat_offsets():
        if mat == "table":
            cols_ = [f"s{sM + j}" for j in range(7)]
        else:
            cols_ = mat["M"]
        a(f"s_mov_b32 s{sOffE}, s{sF}")
        j = 0
        while j < 7:
            if mat != "table":
                c0 = cols_[j]
                if c0 and (c0 & (c0 - 1)) == 0:
                    n = 1
                    while j + n < 7 and cols_[j + n] == c0 << n:
                        n += 1
                    sh = c0.bit_length() - 1 - j
                    a(f"s_and_b32 s{sT1}, s{sTau}, {((1 << n) - 1) << j}")
                    if sh > 0:
                        a(f"s_lshl_b32 s{sT1}, s{sT1}, {sh}")
                    elif sh < 0:
                        a(f"s_lshr_b32 s{sT1}, s{sT1}, {-sh}")
                    a(f"s_xor_b32 s{sOffE}, s{sOffE}, s{sT1}")
                    j += n
                    continue
            a(f"s_bfe_i32 s{sT1}, s{sTau}, {hex(j | (1 << 16))}")
            a(f"s_and_b32 s{sT1}, s{sT1}, {cols_[j]}")
            a(f"s_xor_b32 s{sOffE}, s{sOffE}, s{sT1}")
            j += 1
        a(f"s_lshl_b32 s{sOffK}, s{sOffE}, 11")
        a(f"s_lshl_b32 s{sOffE}, s{sOffE}, 4")
        a(f"v_xor_b32 v{VKA}, s{sOffK}, v{VOFFK}")
        a(f"v_xor_b32 v{VEA}, s{sOffE}, v{VOFFE}")
    if mat is not None:
        if mat == "table":
            a("s_waitcnt lgkmcnt(0)")
            a(f"s_lshl_b32 s{sT1}, s2, 2")
            a(f"s_add_u32 s{sT1}, s{sT1}, 0x300000")
            a(f"s_add_u32 s78, s56, s{sT1}")
            a(f"s_addc_u32 s79, s57, 0")
            a(f"s_load_dword s{sF}, s[78:79], 0")
            a(f"s_add_u32 s78, s56, 0x301000")
            a(f"s_addc_u32 s79, s57, 0")
            a(f"s_load_dwordx8 s[68:75], s[78:79], 0")
            a(f"s_load_dwordx2 s[76:77], s[78:79], 32")
            a("s_waitcnt lgkmcnt(0)")
            a(f"s_and_b32 s{sF}, s{sF}, 511")
            for j in range(7):
                a(f"s_and_b32 s{sM + j}, s{sM + j}, 511")
            a(f"s_and_b32 s76, s76, 511")
            a(f"s_and_b32 s77, s77, 511")
            g0, g1 = "s76", "s77"
        else:
            a(f"s_mov_b32 s{sF}, 0")
            for j, c_ in enumerate(mat["F"]):
                if c_:
                    a(f"s_bfe_i32 s{sT1}, s2, {hex(j | (1 << 16))}")
                    a(f"s_and_b32 s{sT1}, s{sT1}, {c_}")
                    a(f"s_xor_b32 s{sF}, s{sF}, s{sT1}")
            a(f"s_mov_b32 s76, {mat['G'][0]}")
            a(f"s_mov_b32 s77, {mat['G'][1]}")
            g0, g1 = "s76", "s77"
        a(f"v_bfe_i32 v6, v5, 0, 1")
        a(f"v_bfe_i32 v7, v5, 1, 1")
        a(f"v_and_b32 v6, {g0}, v6")
        a(f"v_and_b32 v7, {g1}, v7")
        a(f"v_xor_b32 v6, v6, v7")
        a(f"v_lshlrev_b32 v{VOFFK}, 11, v6")
        a(f"v_lshl_add_u32 v{VOFFK}, v4, 4, v{VOFFK}")
        a(f"v_lshlrev_b32 v{VOFFE}, 13, v4")
        a(f"v_lshl_add_u32 v{VOFFE}, v6, 4, v{VOFFE}")
        a(f"s_mov_b32 s{sTau}, 0")
        mat_offsets()
    elif xs == "table":
        a("s_waitcnt lgkmcnt(0)")
        a(f"s_lshl_b32 s{sT1}, s2, 2")
        a(f"s_add_u32 s{sT1}, s{sT1}, 0x300000")
        a(f"s_add_u32 s78, s56, s{sT1}")
        a(f"s_addc_u32 s79, s57, 0")
        a(f"s_load_dword s{sF}, s[78:79], 0")
        a("s_waitcnt lgkmcnt(0)")
        a(f"s_and_b32 s{sF}, s{sF}, 127")
        a(f"s_mov_b32 s{sTau}, 0")
        tile_offsets(sF)
    elif cols is not None:
        a(f"s_mov_b32 s{sF}, 0")
        for j, c_ in enumerate(cols):
            if c_:
                a(f"s_bfe_i32 s{sT1}, s2, {hex(j | (1 << 16))}")
                a(f"s_and_b32 s{sT1}, s{sT1}, {c_}")
                a(f"s_xor_b32 s{sF}, s{sF}, s{sT1}")
        a(f"s_mov_b32 s{sTau}, 0")
        tile_offsets(sF)
    elif xs is not None:
        a(f"s_mov_b32 s{sF}, 0")
        for (sr_, nb, sl_) in xs:
            a(f"s_lshr_b32 s{sT1}, s2, {sr_}")
            a(f"s_and_b32 s{sT1}, s{sT1}, {(1 << nb) - 1}")
            a(f"s_lshl_b32 s{sT1}, s{sT1}, {sl_}")
            a(f"s_xor_b32 s{sF}, s{sF}, s{sT1}")
        a(f"s_and_b32 s{sF}, s{sF}, 127")
        a(f"s_mov_b32 s{sTau}, 0")
        a(f"s_lshl_b32 s{sOffK}, s{sF}, 13")
        a(f"s_lshl_b32 s{sOffE}, s{sF}, 6")
    elif stg:
        a(f"s_lshr_b32 s{sT1}, s2, {stgsh}")
        a(f"s_mul_i32 s{sT1}, s{sT1}, {stg}")
        a(f"s_and_b32 s{sT1}, s{sT1}, 127")
        a(f"s_lshl_b32 s{sOffK}, s{sT1}, 13")
        a(f"s_lshl_b32 s{sOffE}, s{sT1}, 6")
    else:
        a(f"s_mov_b32 s{sOffK}, 0")
        a(f"s_mov_b32 s{sOffE}, 0")
    a("s_waitcnt lgkmcnt(0)")
    a(f"s_add_u32 s{SP}, s{pk}, s{sT0}")
    a(f"s_addc_u32 s{SP+1}, s{pk+1}, 0")
    a(f"s_and_b32 s{SP+1}, s{SP+1}, 0xffff")
    a(f"s_mov_b32 s{SPE}, s{pe}")
    a(f"s_and_b32 s{SPE+1}, s{pe+1}, 0xffff")

    lab = [0]
    def loads(b, Wv):
        if Wv:
            a(f"s_waitcnt vmcnt({Wv-1})")
        if mat is not None:
            ea, eo, ka, ko = VEA, "0", VKA, "0"
        else:
            ea, eo, ka, ko = VOFFE, f"s{sOffE}", VOFFK, f"s{sOffK}"
        a(f"buffer_load_dwordx4 {eb(b)}, v{ea}, s[{SPE}:{SPE+3}], {eo} offen {eflags}")
        for i in range(8):
            if Wv:
                a(f"s_waitcnt vmcnt({Wv-1})")
            a(f"buffer_load_dwordx4 {vr(KB+32*b+4*i,4)}, v{ka}, s[{SP}:{SP+3}], {ko} offen offset:{i*256} {flags}")
    def advance():
        if mat is not None:
            a(f"s_add_u32 s{sTau}, s{sTau}, 1")
            a(f"s_and_b32 s{sTau}, s{sTau}, 127")
            mat_offsets()
            return
        if xs is not None or cols is not None:
            a(f"s_add_u32 s{sTau}, s{sTau}, 1")
            a(f"s_and_b32 s{sTau}, s{sTau}, 127")
            if gp == 3:
                a(f"s_xor_b32 s{sOffE}, s{sTau}, s{sF}")
                tile_offsets(sOffE)
            else:
                a(f"s_xor_b32 s{sT1}, s{sTau}, s{sF}")
                tile_offsets(sT1)
            return
        a(f"s_add_u32 s{sOffK}, s{sOffK}, 8192")
        a(f"s_and_b32 s{sOffK}, s{sOffK}, 0xfffff")
        a(f"s_add_u32 s{sOffE}, s{sOffE}, 64")
        a(f"s_and_b32 s{sOffE}, s{sOffE}, 0x1fff")
    def rowsum(dst, src, shifts):
        first = True
        for sh in shifts:
            s_ = src if first else dst
            a(f"v_add_u32_dpp v{dst}, v{s_}, v{s_} row_shr:{sh} row_mask:0xf bank_mask:0xf bound_ctrl:0")
            a("s_nop 1")
            first = False

    def issue(b, opening=False):
        lab[0] += 1
        L = lab[0]
        if mode == "X":
            if glob and repfree:
                for ph_ in (b, (b + 3) & 3):
                    a(f"s_cmp_eq_u32 s{sRep}, {ph_ + 1}")
                    a(f"s_cbranch_scc1 L_go{L}")
            a(f"s_waitcnt vmcnt({Xb+3})")
            for lev in (3, 2, 1):
                a(f"s_cmp_ge_u32 s{sL}, {4*lev-b}")
                a(f"s_cbranch_scc1 L_go{L}")
                a(f"s_waitcnt vmcnt({Xb+lev-1})")
            a.label(f"L_go{L}")
        if fb and b == 2:
            rowsum(VT, VC, (1, 2, 4, 8))
            a(f"v_readlane_b32 s{sC}, v{VT}, 15")
            a(f"v_readlane_b32 s{sT0}, v{VT}, 31")
            a(f"s_mul_i32 s{sT1}, s{sNr}, 31")
            a(f"s_add_i32 s{sC}, s{sC}, s{sT0}")
            a(f"s_sub_i32 s{sT0}, s{sT1}, s{sC}")
            if stamp == 6:
                a(f"s_lshr_b32 m0, s{sNr}, 2")
                a(f"s_nop 0")
                a(f"v_writelane_b32 v{VHIST}, s{sT0}, m0")
            if par:
                a(f"s_sub_i32 s{sT0}, s{sT0}, s{sBias}")
            else:
                a(f"s_sub_i32 s{sT0}, s{sT0}, {bias}")
            a(f"s_mul_i32 s{sT0}, s{sT0}, {G}")
            a(f"s_ashr_i32 s{sT0}, s{sT0}, 6")
            a(f"s_sub_i32 s{sT0}, {L0}, s{sT0}")
            a(f"s_max_i32 s{sT0}, s{sT0}, 0")
            a(f"s_min_i32 s{sL}, s{sT0}, {Lmax}")
            if glob or rot:
                a(f"v_readlane_b32 s{sT0}, v{VC}, 0")
                a(f"s_nop 0")
                a(f"s_sub_i32 s{sLsum}, s{sC}, s{sT0}")
                a(f"s_mov_b32 s{sNl}, s{sNr}")
        if fb and rot:
            a(f"s_cmp_eq_u32 s{sN}, s{sRepN2}")
            a(f"s_cbranch_scc0 L_nq{L}")
            rowsum(VT, VG, (1, 2, 4))
            a(f"v_readlane_b32 s{sT0}, v{VT}, 7")
            a(f"v_readlane_b32 s{sT1}, v{VG}, s{sX}")
            a(f"s_ashr_i32 s{sT0}, s{sT0}, 3")
            a(f"s_add_i32 s{sT1}, s{sT1}, s{sOwn}")
            a(f"s_ashr_i32 s{sT1}, s{sT1}, 1")
            a(f"s_sub_i32 s{sT0}, s{sT0}, s{sT1}")
            if goff != 2:
                a(f"s_mul_i32 s{sT0}, s{sT0}, {goff}")
                a(f"s_ashr_i32 s{sT0}, s{sT0}, 1")
            if filt:
                a(f"v_readlane_b32 s{sT1}, v{VC}, 0")
                a(f"s_add_i32 s{sT0}, s{sT0}, {centre}")
                a(f"s_sub_i32 s{sT0}, s{sT0}, s{sT1}")
                a(f"s_ashr_i32 s{sT0}, s{sT0}, {filt}")
                a(f"s_add_i32 s{sT0}, s{sT0}, s{sT1}")
            a(f"s_max_i32 s{sT0}, s{sT0}, {-clampv}")
            a(f"s_min_i32 s{sT0}, s{sT0}, {clampv}")
            a(f"v_mov_b32 v{VT}, s{sT0}")
            a(f"buffer_store_dword v{VT}, v{VOW}, s[{SD}:{SD+3}], 0 offen")
            a.label(f"L_nq{L}")
            a(f"s_cmp_eq_u32 s{sN}, s{sRepN}")
            a(f"s_cbranch_scc0 L_nr{L}")
            a(f"s_sub_i32 s{sOwn}, s{sN}, s{sNl}")
            a(f"s_mul_i32 s{sOwn}, s{sOwn}, 31")
            a(f"s_add_i32 s{sOwn}, s{sOwn}, s{sLsum}")
            a(f"v_mov_b32 v{VT}, s{sOwn}")
            a(f"buffer_load_dword v{VG}, v{VGR}, s[{SD}:{SD+3}], 0 offen {grflags}")
            a(f"buffer_store_dword v{VT}, v{VGW}, s[{SD}:{SD+3}], 0 offen {gsflags}")
            a.label(f"L_nr{L}")
        if fb and glob:
            a(f"s_cmp_eq_u32 s{sRep}, {((b + 2) & 3) + 1}")
            a(f"s_cbranch_scc0 L_nq{L}")
            if mode == "F":
                a("s_waitcnt vmcnt(19)")
            rowsum(VT, VG, (1, 2, 4))
            a(f"v_readlane_b32 s{sT0}, v{VT}, 7")
            a(f"s_add_i32 s{sT1}, s{sOwn}, s{sPrev}")
            a(f"s_ashr_i32 s{sT0}, s{sT0}, 3")
            a(f"s_ashr_i32 s{sT1}, s{sT1}, 1")
            a(f"s_sub_i32 s{sT0}, s{sT0}, s{sT1}")
            a(f"v_mov_b32 v{VT}, s{sT0}")
            a(f"buffer_store_dword v{VT}, v{VOW}, s[{SD}:{SD+3}], 0 offen")
            a.label(f"L_nq{L}")
            a(f"s_cmp_eq_u32 s{sRep}, {b + 1}")
            a(f"s_cbranch_scc0 L_nr{L}")
            if RG > 1:
                a(f"s_lshr_b32 s{sT0}, s{sN}, 2")
                a(f"s_add_u32 s{sT0}, s{sT0}, s{sRph}")
                a(f"s_and_b32 s{sT0}, s{sT0}, {RG-1}")
                a(f"s_cbranch_scc1 L_nr{L}")
            a(f"s_mov_b32 s{sPrev}, s{sOwn}")
            a(f"s_sub_i32 s{sOwn}, s{sN}, s{sNl}")
            a(f"s_mul_i32 s{sOwn}, s{sOwn}, 31")
            a(f"s_add_i32 s{sOwn}, s{sOwn}, s{sLsum}")
            a(f"v_mov_b32 v{VT}, s{sOwn}")
            a(f"buffer_load_dword v{VG}, v{VGR}, s[{SD}:{SD+3}], 0 offen {grflags}")
            a(f"buffer_store_dword v{VT}, v{VGW}, s[{SD}:{SD+3}], 0 offen {gsflags}")
            a.label(f"L_nr{L}")
        if fb:
            if stag:
                a(f"s_cmp_eq_u32 s{sPh}, {b}")
                a(f"s_cbranch_scc0 L_np{L}")
                a(f"v_mov_b32 v{VPUB}, s{sN}")
                a(f"buffer_store_dword v{VPUB}, v{VCOFF}, s[{SD}:{SD+3}], 0 offen")
                a.label(f"L_np{L}")
            elif b == 0:
                a(f"v_mov_b32 v{VPUB}, s{sN}")
                a(f"buffer_store_dword v{VPUB}, v{VCOFF}, s[{SD}:{SD+3}], 0 offen")
            if b == 0:
                a(f"s_mov_b32 s{sNr}, s{sN}")
                a(f"buffer_load_dword v{VC}, v{VROFF}, s[{SD}:{SD+3}], 0 offen {rflags}")
        a(f"s_add_u32 s{sN}, s{sN}, 1")
        if mode == "F":
            if opening:
                a(f"s_cmp_eq_u32 s{sCnt}, 1")
                a(f"s_cbranch_scc1 L_fr{L}")
            if glob and repfree:
                for ph_ in (b, (b + 3) & 3):
                    a(f"s_cmp_eq_u32 s{sRep}, {ph_ + 1}")
                    a(f"s_cbranch_scc1 L_fr{L}")
            a(f"s_cmp_ge_u32 s{sL}, {8-b}")
            a(f"s_cbranch_scc1 L_hi{L}")
            a(f"s_cmp_ge_u32 s{sL}, {4-b}")
            a(f"s_cbranch_scc1 L_ka{L}")
            loads(b, Wb)
            a(f"s_branch L_dn{L}")
            a.label(f"L_ka{L}")
            loads(b, Wb + Ws)
            a(f"s_branch L_dn{L}")
            a.label(f"L_hi{L}")
            a(f"s_cmp_ge_u32 s{sL}, {12-b}")
            a(f"s_cbranch_scc1 L_kb{L}")
            loads(b, Wb + 2 * Ws)
            a(f"s_branch L_dn{L}")
            a.label(f"L_kb{L}")
            loads(b, Wb + 3 * Ws)
            if (glob and repfree) or opening:
                a(f"s_branch L_dn{L}")
                a.label(f"L_fr{L}")
                loads(b, 0)
            a.label(f"L_dn{L}")
        else:
            loads(b, 0)
        advance()

    def consume(b, isV):
        def perms(j):
            t = TMP + 4 * (j & 1)
            p = j >> 1
            sel = sSelHi if (j & 1) else sSelLo
            for vv in range(4):
                r0 = KB + 32 * b + 4 * (2 * vv) + p
                r1 = KB + 32 * b + 4 * (2 * vv + 1) + p
                a(f"v_perm_b32 v{t+vv}, v{r1}, v{r0}, s{sel}")
        def mf(j):
            t = TMP + 4 * (j & 1)
            if isV:
                a(f"v_mfma_f32_16x16x32_bf16 {vr(ACC+4*j,4)}, {eb(b)}, {vr(t,4)}, {vr(ACC+4*j,4)}")
            else:
                a(f"v_mfma_f32_16x16x32_bf16 {vr(ACC+4*j,4)}, {vr(t,4)}, {eb(b)}, {vr(ACC+4*j,4)}")
        perms(0)
        for j in range(8):
            if j + 1 < 8:
                perms(j + 1)
            else:
                a("s_nop 1")
            mf(j)

    for b in range(D):
        if X0 >= 0 and b > 0:
            a(f"s_waitcnt vmcnt({X0})")
        loads(b, W0)
        advance()
        if b == 0:
            a(f"v_lshlrev_b32 v{VOFFQ}, 8, v4")
            a(f"v_lshl_add_u32 v{VOFFQ}, v5, 6, v{VOFFQ}")
            for (S, p) in ((SK, pk), (SV, pv)):
                a(f"s_add_u32 s{S}, s{p}, s{sT0}")
                a(f"s_addc_u32 s{S+1}, s{p+1}, 0")
                a(f"s_and_b32 s{S+1}, s{S+1}, 0xffff")
                a(f"s_mov_b32 s{S+2}, 0x100000")
                a(f"s_mov_b32 s{S+3}, 0x20000")
            a(f"s_mov_b32 s{SF}, s{pf}")
            a(f"s_and_b32 s{SF+1}, s{pf+1}, 0xffff")
            a(f"s_mov_b32 s{SF+2}, 0x20000")
            a(f"s_mov_b32 s{SF+3}, 0x20000")
            a(f"s_lshl_b32 s{sT0}, s2, 12")
            for (S, p) in ((SQ, pq), (SO, po)):
                a(f"s_add_u32 s{S}, s{p}, s{sT0}")
                a(f"s_addc_u32 s{S+1}, s{p+1}, 0")
                a(f"s_and_b32 s{S+1}, s{S+1}, 0xffff")
                a(f"s_mov_b32 s{S+2}, 0x1000")
                a(f"s_mov_b32 s{S+3}, 0x20000")
            for t in range(4):
                a(f"buffer_load_dwordx4 {vr(QF+4*t,4)}, v{VOFFQ}, s[{SQ}:{SQ+3}], 0 offen offset:{t*16}")
            if vtouch:
                a(f"buffer_load_dword v{VT}, off, s[{SV}:{SV+3}], 0 nt")
                a(f"buffer_load_dword v{VT}, off, s[{SF}:{SF+3}], 0")
    a(f"s_mov_b32 s{sSelLo}, 0x05040100")
    a(f"s_mov_b32 s{sSelHi}, 0x07060302")
    a(f"s_mov_b32 s{sN}, 0")
    a(f"s_mov_b32 s{sNr}, 0")
    a(f"s_mov_b32 s{sL}, {L0}")
    if fb:
        a(f"s_mov_b32 s{SD}, s{pd}")
        a(f"s_and_b32 s{SD+1}, s{pd+1}, 0xffff")
        a(f"s_mov_b32 s{SD+2}, 256")
        a(f"s_mov_b32 s{SD+3}, 0x20000")
        a(f"s_lshr_b32 s{sT0}, s2, 3")
        a(f"s_and_b32 s{sPh}, s{sT0}, 3")
        a(f"s_sub_u32 s{sT1}, s{sT0}, 1")
        a(f"s_lshl_b32 s{sT0}, s{sT0}, 2")
        a(f"s_cmp_lt_u32 s{sT1}, 31")
        a(f"s_cselect_b32 s{sT0}, s{sT0}, 0x40000000")
        a(f"v_mov_b32 v{VCOFF}, 0x40000000")
        a(f"v_mov_b32 v{VC}, s{sT0}")
        a(f"v_cmp_eq_u32 vcc, 0, v0")
        a(f"s_nop 0")
        a(f"v_cndmask_b32 v{VCOFF}, v{VCOFF}, v{VC}, vcc")
        a(f"v_lshlrev_b32 v{VROFF}, 2, v0")
        a(f"v_mov_b32 v{VC}, 0x40000000")
        a(f"v_cmp_gt_u32 vcc, 32, v0")
        a(f"s_nop 0")
        a(f"v_cndmask_b32 v{VROFF}, v{VC}, v{VROFF}, vcc")
        if par:
            a(f"s_getreg_b32 s{sT0}, hwreg(HW_REG_XCC_ID, 0, 1)")
            a(f"s_mul_i32 s{sT0}, s{sT0}, {2 * par}")
            a(f"s_sub_i32 s{sBias}, {bias + par}, s{sT0}")
        if rot:
            a(f"s_getreg_b32 s{sX}, hwreg(HW_REG_XCC_ID, 0, 3)")
            a(f"s_lshr_b32 s{sT0}, s2, 3")
            a(f"s_sub_u32 s{sT1}, s{sT0}, 1")
            a(f"s_lshl_b32 s{sT0}, s{sT0}, 3")
            a(f"s_add_u32 s{sT0}, s{sT0}, s{sX}")
            a(f"s_cmp_lt_u32 s{sT1}, {rotlast}")
            a(f"s_cselect_b32 s{sRepN}, s{sT0}, 0x7fff0000")
            if rotstep > 1:
                a(f"s_lshr_b32 s{sT1}, s2, 3")
                a(f"s_and_b32 s{sT1}, s{sT1}, {rotstep-1}")
                a(f"s_cselect_b32 s{sRepN}, 0x7fff0000, s{sRepN}")
            a(f"s_add_u32 s{sRepN2}, s{sRepN}, 2")
            a(f"s_mov_b32 s{sOwn}, 0")
            a(f"s_mov_b32 s{sLsum}, 0")
            a(f"s_mov_b32 s{sNl}, 0")
            a(f"s_lshl_b32 s{sT0}, s{sX}, 2")
            a(f"s_add_u32 s{sT0}, s{sT0}, 128")
            a(f"v_mov_b32 v{VG}, s{sT0}")
            a(f"v_cmp_eq_u32 vcc, 0, v0")
            a(f"s_nop 0")
            a(f"v_cndmask_b32 v{VGW}, v{VC}, v{VG}, vcc")
            a(f"v_mov_b32 v{VG}, 0")
            a(f"s_nop 0")
            a(f"v_cndmask_b32 v{VOW}, v{VC}, v{VG}, vcc")
            a(f"v_lshlrev_b32 v{VGR}, 2, v0")
            a(f"v_add_u32 v{VGR}, 128, v{VGR}")
            a(f"v_cmp_gt_u32 vcc, 8, v0")
            a(f"s_nop 0")
            a(f"v_cndmask_b32 v{VGR}, v{VC}, v{VGR}, vcc")
        if glob:
            a(f"s_and_b32 s{sT0}, s2, 3")
            a(f"s_add_u32 s{sT0}, s{sT0}, 1")
            a(f"s_cmp_lt_u32 s2, 8")
            a(f"s_cselect_b32 s{sRep}, s{sT0}, 0")
            a(f"s_mov_b32 s{sLsum}, 0")
            a(f"s_mov_b32 s{sNl}, 0")
            a(f"s_lshr_b32 s{sRph}, s2, 2")
            a(f"s_mov_b32 s{sOwn}, 0")
            a(f"s_mov_b32 s{sPrev}, 0")
            a(f"s_and_b32 s{sT0}, s2, 7")
            a(f"s_lshl_b32 s{sT0}, s{sT0}, 2")
            a(f"s_add_u32 s{sT0}, s{sT0}, 128")
            a(f"v_mov_b32 v{VG}, s{sT0}")
            a(f"v_cmp_eq_u32 vcc, 0, v0")
            a(f"s_nop 0")
            a(f"v_cndmask_b32 v{VGW}, v{VC}, v{VG}, vcc")
            a(f"v_mov_b32 v{VG}, 0")
            a(f"s_nop 0")
            a(f"v_cndmask_b32 v{VOW}, v{VC}, v{VG}, vcc")
            a(f"v_lshlrev_b32 v{VGR}, 2, v0")
            a(f"v_add_u32 v{VGR}, 128, v{VGR}")
            a(f"v_cmp_gt_u32 vcc, 8, v0")
            a(f"s_nop 0")
            a(f"v_cndmask_b32 v{VGR}, v{VC}, v{VGR}, vcc")
        a(f"v_mov_b32 v{VC}, 0")
    for i in range(32):
        a(f"v_mov_b32 v{ACC+i}, 0")
    if stamp in (2, 6):
        a(f"v_mov_b32 v{VHIST}, 0")
    for ph in range(2):
        last = ph == 1
        a(f"s_mov_b32 s{sCnt}, {steps // D}")
        a.label(f"L_loop{ph}")
        if last and tail:
            if endpub and endpos == 1:
                a(f"s_cmp_eq_u32 s{sCnt}, 1")
                a(f"s_cbranch_scc0 L_nosw{ph}")
                a(f"v_mov_b32 v{VPUB}, {endpub}")
                a(f"buffer_store_dword v{VPUB}, v{VCOFF}, s[{SD}:{SD+3}], 0 offen")
                a.label(f"L_nosw{ph}")
        else:
            a(f"s_cmp_eq_u32 s{sCnt}, 1")
            a(f"s_cbranch_scc0 L_nosw{ph}")
            if last:
                a(f"s_mov_b32 s{SP+2}, 0")
                a(f"s_mov_b32 s{SPE+2}, 0")
            else:
                for i in range(3):
                    a(f"s_mov_b32 s{SP+i}, s{SV+i}")
                    a(f"s_mov_b32 s{SPE+i}, s{SF+i}")
            a.label(f"L_nosw{ph}")
        for b in range(D):
            if last and tail and b > 0:
                a(f"s_cmp_eq_u32 s{sCnt}, 1")
                a(f"s_cbranch_scc0 L_tw{b}")
                a(f"s_waitcnt vmcnt({(D-1-b)*9})")
                a.label(f"L_tw{b}")
            a(f"s_waitcnt vmcnt({(D-1)*9})")
            if stamp == 2 and b == 0:
                a("s_memrealtime s[42:43]")
            consume(b, ph == 1)
            if stamp == 2 and b == 0:
                a("s_waitcnt lgkmcnt(0)")
                a(f"s_lshr_b32 m0, s{sN}, 2")
                a("s_nop 0")
                a(f"v_writelane_b32 v{VHIST}, s42, m0")
            if last and tail:
                a(f"s_cmp_eq_u32 s{sCnt}, 1")
                a(f"s_cbranch_scc1 L_ts{b}")
            issue(b, opening=(ph == 0 and b >= D - openk))
            if last and tail:
                a.label(f"L_ts{b}")
        a(f"s_sub_u32 s{sCnt}, s{sCnt}, 1")
        a(f"s_cmp_lg_u32 s{sCnt}, 0")
        a(f"s_cbranch_scc1 L_loop{ph}")
        if ph == 0:
            a("s_nop 7")
            for t in range(4):
                tt = TMP + 4 * (t & 1)
                for vv in range(4):
                    a(f"v_cvt_pk_bf16_f32 v{tt+vv}, v{ACC+4*(2*vv)+t}, v{ACC+4*(2*vv+1)+t}")
                a("s_nop 1")
                c = "0" if t == 0 else vr(SC, 4)
                a(f"v_mfma_f32_16x16x32_bf16 {vr(SC,4)}, {vr(tt,4)}, {vr(QF+4*t,4)}, {c}")
            for i in range(32):
                a(f"v_mov_b32 v{ACC+i}, 0")
            a(f"v_cvt_pk_bf16_f32 v4, v{SC}, v{SC+1}")
            a(f"v_cvt_pk_bf16_f32 v5, v{SC+2}, v{SC+3}")
            a(f"v_lshlrev_b32 v6, 16, v4")
            a(f"v_and_b32 v7, 0xffff0000, v4")
            a(f"v_lshlrev_b32 v8, 16, v5")
            a(f"v_and_b32 v9, 0xffff0000, v5")
            a(f"s_mov_b32 s{sT0}, 0x3db504f3")
            for i in range(4):
                a(f"v_mul_f32 v{6+i}, s{sT0}, v{6+i}")
            a(f"v_cvt_pk_bf16_f32 v4, v6, v7")
            a(f"v_cvt_pk_bf16_f32 v5, v8, v9")
            a(f"v_lshlrev_b32 v6, 16, v4")
            a(f"v_and_b32 v7, 0xffff0000, v4")
            a(f"v_lshlrev_b32 v8, 16, v5")
            a(f"v_and_b32 v9, 0xffff0000, v5")
            a("v_max_f32 v4, v6, v7")
            a("v_max3_f32 v4, v4, v8, v9")
            def xreduce(op):
                a("v_mov_b32 v5, v4")
                a("s_nop 1")
                a("v_permlane32_swap_b32 v4, v5")
                a("s_nop 1")
                a(f"{op} v4, v4, v5")
                a("v_mov_b32 v5, v4")
                a("s_nop 1")
                a("v_permlane16_swap_b32 v4, v5")
                a("s_nop 1")
                a(f"{op} v4, v4, v5")
            xreduce("v_max_f32")
            a(f"s_mov_b32 s{sT0}, 0x3fb8aa3b")
            for i in range(4):
                a(f"v_sub_f32 v{6+i}, v{6+i}, v4")
            for i in range(4):
                a(f"v_mul_f32 v{6+i}, s{sT0}, v{6+i}")
            for i in range(4):
                a(f"v_exp_f32 v{6+i}, v{6+i}")
            a("s_nop 0")
            a("v_add_f32 v4, v6, v7")
            a("v_add_f32 v5, v8, v9")
            a("v_add_f32 v4, v4, v5")
            xreduce("v_add_f32")
            a("v_rcp_f32 v4, v4")
            a("s_nop 0")
            for i in range(4):
                a(f"v_mul_f32 v{6+i}, v4, v{6+i}")
            a(f"v_cvt_pk_bf16_f32 v{PP}, v6, v7")
            a(f"v_cvt_pk_bf16_f32 v{PP+1}, v8, v9")
    if fb and endpub and not (tail and endpos == 1):
        a(f"v_mov_b32 v{VPUB}, {endpub}")
        a(f"buffer_store_dword v{VPUB}, v{VCOFF}, s[{SD}:{SD+3}], 0 offen")
    a("s_nop 7")
    O = KB
    if not tail:
        a("s_waitcnt vmcnt(0)")
    for j in range(8):
        tt = TMP + 2 * (j & 3)
        a(f"v_cvt_pk_bf16_f32 v{tt}, v{ACC+4*j}, v{ACC+4*j+1}")
        a(f"v_cvt_pk_bf16_f32 v{tt+1}, v{ACC+4*j+2}, v{ACC+4*j+3}")
        a("s_nop 1")
        a(f"v_mfma_f32_16x16x16_bf16 {vr(O+4*j,4)}, {vr(PP,2)}, {vr(tt,2)}, 0")
    a("s_nop 7")
    a("v_lshrrev_b32 v5, 4, v0")
    a("v_and_b32 v4, 15, v0")
    a("v_lshlrev_b32 v3, 10, v5")
    a("v_lshl_add_u32 v3, v4, 4, v3")
    for t in range(4):
        for vv in range(4):
            a(f"v_cvt_pk_bf16_f32 v{ACC+4*t+vv}, v{O+4*(2*vv)+t}, v{O+4*(2*vv+1)+t}")
        a(f"buffer_store_dwordx4 {vr(ACC+4*t,4)}, v3, s[{SO}:{SO+3}], 0 offen offset:{t*256} {oflags}")
    if stamp:
        a(f"s_mov_b32 s68, s56")
        a(f"s_and_b32 s69, s57, 0xffff")
        a(f"s_mov_b32 s70, 0x10000000")
        a(f"s_mov_b32 s71, 0x20000")
        a("s_waitcnt vmcnt(0)")
        a("s_memrealtime s[42:43]")
        a(f"s_getreg_b32 s72, hwreg(HW_REG_XCC_ID)")
        a(f"s_getreg_b32 s73, hwreg(HW_REG_HW_ID)")
        a("s_waitcnt lgkmcnt(0)")
        a(f"v_mov_b32 v4, s{sStart}")
        a(f"v_mov_b32 v5, s{sStart+1}")
        a(f"v_mov_b32 v6, s42")
        a(f"v_mov_b32 v7, s43")
        a(f"v_mov_b32 v8, s72")
        a(f"v_mov_b32 v9, s73")
        a(f"v_mov_b32 v10, 0")
        a(f"v_mov_b32 v11, 0")
        a(f"s_lshl_b32 s{sT1}, s2, 5")
        a(f"v_mov_b32 v3, 0")
        a("v_cmp_eq_u32 vcc, 0, v0")
        a("s_and_saveexec_b64 s[74:75], vcc")
        a(f"buffer_store_dwordx4 v[4:7], v3, s[68:71], s{sT1} offen")
        a(f"buffer_store_dwordx4 v[8:11], v3, s[68:71], s{sT1} offen offset:16")
        a("s_mov_b64 exec, s[74:75]")
        if stamp in (2, 6):
            a(f"s_lshl_b32 s{sT1}, s2, 8")
            a(f"s_add_u32 s{sT1}, s{sT1}, 0x200000")
            a("v_lshlrev_b32 v3, 2, v0")
            a(f"buffer_store_dword v{VHIST}, v3, s[68:71], s{sT1} offen")
    if helper:
        a("s_endpgm")
        a.label("L_helper")
        a("s_load_dwordx2 s[58:59], s[0:1], 48")
        a(f"s_getreg_b32 s{sT0}, hwreg(HW_REG_XCC_ID, 0, 3)")
        a(f"s_lshl_b32 s{sT0}, s{sT0}, 2")
        a(f"s_add_u32 s{sT0}, s{sT0}, 128")
        a(f"v_mov_b32 v{VT}, 0x40000000")
        a(f"v_lshlrev_b32 v{VROFF}, 2, v0")
        a(f"v_add_u32 v{VGR}, 128, v{VROFF}")
        a(f"v_cmp_gt_u32 vcc, 32, v0")
        a(f"s_nop 0")
        a(f"v_cndmask_b32 v{VROFF}, v{VT}, v{VROFF}, vcc")
        a(f"v_cmp_gt_u32 vcc, 8, v0")
        a(f"s_nop 0")
        a(f"v_cndmask_b32 v{VGR}, v{VT}, v{VGR}, vcc")
        a(f"v_mov_b32 v{VG}, s{sT0}")
        a(f"v_mov_b32 v{VC}, 0")
        a(f"v_cmp_eq_u32 vcc, 0, v0")
        a(f"s_nop 0")
        a(f"v_cndmask_b32 v{VGW}, v{VT}, v{VG}, vcc")
        a(f"v_cndmask_b32 v{VOW}, v{VT}, v{VC}, vcc")
        a(f"s_mov_b32 s{sOwn}, 0")
        a(f"s_mov_b32 s{sCnt}, 0")
        a("s_waitcnt lgkmcnt(0)")
        a(f"s_mov_b32 s{SD}, s{pd}")
        a(f"s_and_b32 s{SD+1}, s{pd+1}, 0xffff")
        a(f"s_mov_b32 s{SD+2}, 256")
        a(f"s_mov_b32 s{SD+3}, 0x20000")
        a.label("L_hloop")
        a(f"buffer_load_dword v{VC}, v{VROFF}, s[{SD}:{SD+3}], 0 offen {rflags}")
        a(f"buffer_load_dword v{VG}, v{VGR}, s[{SD}:{SD+3}], 0 offen {grflags}")
        a("s_waitcnt vmcnt(0)")
        rowsum(VT, VC, (1, 2, 4, 8))
        a(f"v_readlane_b32 s{sC}, v{VT}, 15")
        a(f"v_readlane_b32 s{sT0}, v{VT}, 31")
        a(f"v_readlane_b32 s{sT1}, v{VC}, 0")
        rowsum(VT, VG, (1, 2, 4))
        a(f"s_add_i32 s{sC}, s{sC}, s{sT0}")
        a(f"v_readlane_b32 s{sT0}, v{VT}, 7")
        a(f"s_mov_b32 s{sPrev}, s{sOwn}")
        a(f"s_sub_i32 s{sOwn}, s{sC}, s{sT1}")
        a(f"s_add_i32 s{sT1}, s{sOwn}, s{sPrev}")
        a(f"s_ashr_i32 s{sT0}, s{sT0}, 3")
        a(f"s_ashr_i32 s{sT1}, s{sT1}, 1")
        a(f"s_sub_i32 s{sT0}, s{sT0}, s{sT1}")
        a(f"s_max_i32 s{sT0}, s{sT0}, {-clampv}")
        a(f"s_min_i32 s{sT0}, s{sT0}, {clampv}")
        a(f"v_mov_b32 v{VT}, s{sOwn}")
        a(f"v_mov_b32 v{VPUB}, s{sT0}")
        a(f"buffer_store_dword v{VT}, v{VGW}, s[{SD}:{SD+3}], 0 offen {gsflags}")
        a(f"buffer_store_dword v{VPUB}, v{VOW}, s[{SD}:{SD+3}], 0 offen")
        a(f"s_add_u32 s{sCnt}, s{sCnt}, 1")
        a(f"s_cmp_ge_i32 s{sOwn}, {hthr}")
        a(f"s_cbranch_scc1 L_hdone")
        a(f"s_cmp_lt_u32 s{sCnt}, {hmax}")
        a(f"s_cbranch_scc1 L_hloop")
        a.label("L_hdone")
        if stamp:
            a(f"s_getreg_b32 s{sT0}, hwreg(HW_REG_XCC_ID, 0, 3)")
            a(f"s_lshl_b32 s{sT0}, s{sT0}, 2")
            a(f"s_add_u32 s{sT0}, s{sT0}, 192")
            a(f"v_mov_b32 v{VT}, s{sCnt}")
            a(f"buffer_store_dword v{VT}, v{VOW}, s[{SD}:{SD+3}], s{sT0} offen sc1")
    a.label("L_end")
    a("s_endpgm")
    return wrap(a.text(), ngrid, 64, lds, nv, accum), dict(nwaves=512, nv=nv)

if __name__ == "__main__":
    import json
    kw = json.loads(sys.argv[1]) if len(sys.argv) > 1 else {}
    s, info = gen(**kw)
    print(s)
```

```python
import sys
from asmlib import *

def gen(D=4, flags="nt", eflags="", lds=81920, stamp=0, oflags="sc0 sc1", mode="X", Xb=7, Wb=8, Ws=2, W0=0, X0=-1,
        G=2, L0=4, bias=64, Lmax=12, glob=False, RG=1, endpub=0, rflags="sc1", gsflags="sc1", grflags="sc1",
        fb=True, nlev=4, ldfirst=True, stag=True, repfree=True, stg=0, stgsh=0, xs=None, cols=None, vtouch=False, rot=False, rotlast=28, rotstep=1, filt=0, centre=0, goff=2, par=0, helper=False, clampv=93, hmax=128, hthr=31*256, gp=3, mat=None, tail=0, endpos=0, openk=0, nb=0, dL=0):
    a = Asm()
    nwg = 512
    steps = 128
    VOFFK, VOFFE, VOFFQ = 1, 2, 3
    TMP = 4
    ACC = 12
    QF = 44
    PP = 60
    VHIST, VT = 62, 63
    SC = 64
    VCOFF, VC, VROFF, VPUB = 68, 69, 70, 71
    VGW, VGR, VG, VOW = 72, 73, 74, 75
    KB = 76
    EB = KB + 32 * D
    nv = EB + 4 * D
    VKA, VEA = nv, nv + 1
    if mat is not None:
        nv += 2
    assert nv <= 256
    accum = (nv + 3) // 4 * 4
    eb = lambda i: vr(EB + 4 * i, 4)
    SK, SV, SE, SF = 4, 8, 12, 16
    SP, SPE = 20, 24
    sOffK, sOffE, sCnt, sSelLo, sSelHi = 28, 29, 30, 31, 32
    sT0, sT1 = 36, 37
    sStart = 40
    SQ, SO, SD = 60, 64, 88
    sN, sL, sC, sNr, sRep, sOwn, sPrev = 92, 94, 95, 96, 97, 98, 99
    sPh, sLsum, sNl, sRph = 93, 87, 86, 85
    sRepN, sRepN2, sX, sBias = 84, 83, 82, 81
    pq, pk, pv, pe, pf, po, pd = 44, 46, 48, 50, 52, 54, 58
    ngrid = nwg + (8 if helper else 0)
    a(f"s_cmp_ge_u32 s2, {ngrid}")
    a("s_cbranch_scc1 L_end")
    if helper:
        a(f"s_cmp_ge_u32 s2, {nwg}")
        a("s_cbranch_scc1 L_helper")
    if stamp:
        a(f"s_memrealtime s[{sStart}:{sStart+1}]")
    a("s_load_dwordx4 s[44:47], s[0:1], 0")
    a("s_load_dwordx4 s[48:51], s[0:1], 16")
    a("s_load_dwordx4 s[52:55], s[0:1], 32")
    a("s_load_dwordx2 s[58:59], s[0:1], 48")
    if stamp:
        a("s_load_dwordx2 s[56:57], s[0:1], 56")
    a("v_and_b32 v4, 15, v0")
    a("v_lshrrev_b32 v5, 4, v0")
    if mat is None:
        a(f"v_lshlrev_b32 v{VOFFK}, {gp + 8}, v5")
        a(f"v_lshl_add_u32 v{VOFFK}, v4, 4, v{VOFFK}")
        a(f"v_lshlrev_b32 v{VOFFE}, 13, v4")
        a(f"v_lshl_add_u32 v{VOFFE}, v5, {gp + 1}, v{VOFFE}")
    a(f"s_lshl_b32 s{sT0}, s2, 20")
    a(f"s_mov_b32 s{SP+2}, 0x100000")
    a(f"s_mov_b32 s{SP+3}, 0x20000")
    a(f"s_mov_b32 s{SPE+2}, 0x20000")
    a(f"s_mov_b32 s{SPE+3}, 0x20000")
    sTau, sF = 34, 35
    def tile_offsets(src):
        if gp == 3:
            a(f"s_lshl_b32 s{sOffK}, s{src}, 13")
            a(f"s_lshl_b32 s{sOffE}, s{src}, 6")
            return
        a(f"s_and_b32 s{sOffK}, s{src}, {(1 << (gp - 3)) - 1}")
        a(f"s_lshr_b32 s{sOffE}, s{src}, {gp - 3}")
        a(f"s_lshl_b32 s{sOffE}, s{sOffE}, {gp - 1}")
        a(f"s_or_b32 s{sOffE}, s{sOffE}, s{sOffK}")
        a(f"s_lshl_b32 s{sOffK}, s{sOffE}, 11")
        a(f"s_lshl_b32 s{sOffE}, s{sOffE}, 4")
    sM = 68
    def mat_offsets():
        if mat == "table":
            cols_ = [f"s{sM + j}" for j in range(7)]
        else:
            cols_ = mat["M"]
        a(f"s_mov_b32 s{sOffE}, s{sF}")
        j = 0
        while j < 7:
            if mat != "table":
                c0 = cols_[j]
                if c0 and (c0 & (c0 - 1)) == 0:
                    n = 1
                    while j + n < 7 and cols_[j + n] == c0 << n:
                        n += 1
                    sh = c0.bit_length() - 1 - j
                    a(f"s_and_b32 s{sT1}, s{sTau}, {((1 << n) - 1) << j}")
                    if sh > 0:
                        a(f"s_lshl_b32 s{sT1}, s{sT1}, {sh}")
                    elif sh < 0:
                        a(f"s_lshr_b32 s{sT1}, s{sT1}, {-sh}")
                    a(f"s_xor_b32 s{sOffE}, s{sOffE}, s{sT1}")
                    j += n
                    continue
            a(f"s_bfe_i32 s{sT1}, s{sTau}, {hex(j | (1 << 16))}")
            a(f"s_and_b32 s{sT1}, s{sT1}, {cols_[j]}")
            a(f"s_xor_b32 s{sOffE}, s{sOffE}, s{sT1}")
            j += 1
        a(f"s_lshl_b32 s{sOffK}, s{sOffE}, 11")
        a(f"s_lshl_b32 s{sOffE}, s{sOffE}, 4")
        a(f"v_xor_b32 v{VKA}, s{sOffK}, v{VOFFK}")
        a(f"v_xor_b32 v{VEA}, s{sOffE}, v{VOFFE}")
    if mat is not None:
        if mat == "table":
            a("s_waitcnt lgkmcnt(0)")
            a(f"s_lshl_b32 s{sT1}, s2, 2")
            a(f"s_add_u32 s{sT1}, s{sT1}, 0x300000")
            a(f"s_add_u32 s78, s56, s{sT1}")
            a(f"s_addc_u32 s79, s57, 0")
            a(f"s_load_dword s{sF}, s[78:79], 0")
            a(f"s_add_u32 s78, s56, 0x301000")
            a(f"s_addc_u32 s79, s57, 0")
            a(f"s_load_dwordx8 s[68:75], s[78:79], 0")
            a(f"s_load_dwordx2 s[76:77], s[78:79], 32")
            a("s_waitcnt lgkmcnt(0)")
            a(f"s_and_b32 s{sF}, s{sF}, 511")
            for j in range(7):
                a(f"s_and_b32 s{sM + j}, s{sM + j}, 511")
            a(f"s_and_b32 s76, s76, 511")
            a(f"s_and_b32 s77, s77, 511")
            g0, g1 = "s76", "s77"
        else:
            a(f"s_mov_b32 s{sF}, 0")
            for j, c_ in enumerate(mat["F"]):
                if c_:
                    a(f"s_bfe_i32 s{sT1}, s2, {hex(j | (1 << 16))}")
                    a(f"s_and_b32 s{sT1}, s{sT1}, {c_}")
                    a(f"s_xor_b32 s{sF}, s{sF}, s{sT1}")
            a(f"s_mov_b32 s76, {mat['G'][0]}")
            a(f"s_mov_b32 s77, {mat['G'][1]}")
            g0, g1 = "s76", "s77"
        a(f"v_bfe_i32 v6, v5, 0, 1")
        a(f"v_bfe_i32 v7, v5, 1, 1")
        a(f"v_and_b32 v6, {g0}, v6")
        a(f"v_and_b32 v7, {g1}, v7")
        a(f"v_xor_b32 v6, v6, v7")
        a(f"v_lshlrev_b32 v{VOFFK}, 11, v6")
        a(f"v_lshl_add_u32 v{VOFFK}, v4, 4, v{VOFFK}")
        a(f"v_lshlrev_b32 v{VOFFE}, 13, v4")
        a(f"v_lshl_add_u32 v{VOFFE}, v6, 4, v{VOFFE}")
        a(f"s_mov_b32 s{sTau}, 0")
        mat_offsets()
    elif xs == "table":
        a("s_waitcnt lgkmcnt(0)")
        a(f"s_lshl_b32 s{sT1}, s2, 2")
        a(f"s_add_u32 s{sT1}, s{sT1}, 0x300000")
        a(f"s_add_u32 s78, s56, s{sT1}")
        a(f"s_addc_u32 s79, s57, 0")
        a(f"s_load_dword s{sF}, s[78:79], 0")
        a("s_waitcnt lgkmcnt(0)")
        a(f"s_and_b32 s{sF}, s{sF}, 127")
        a(f"s_mov_b32 s{sTau}, 0")
        tile_offsets(sF)
    elif cols is not None:
        a(f"s_mov_b32 s{sF}, 0")
        for j, c_ in enumerate(cols):
            if c_:
                a(f"s_bfe_i32 s{sT1}, s2, {hex(j | (1 << 16))}")
                a(f"s_and_b32 s{sT1}, s{sT1}, {c_}")
                a(f"s_xor_b32 s{sF}, s{sF}, s{sT1}")
        a(f"s_mov_b32 s{sTau}, 0")
        tile_offsets(sF)
    elif xs is not None:
        a(f"s_mov_b32 s{sF}, 0")
        for (sr_, nb, sl_) in xs:
            a(f"s_lshr_b32 s{sT1}, s2, {sr_}")
            a(f"s_and_b32 s{sT1}, s{sT1}, {(1 << nb) - 1}")
            a(f"s_lshl_b32 s{sT1}, s{sT1}, {sl_}")
            a(f"s_xor_b32 s{sF}, s{sF}, s{sT1}")
        a(f"s_and_b32 s{sF}, s{sF}, 127")
        a(f"s_mov_b32 s{sTau}, 0")
        a(f"s_lshl_b32 s{sOffK}, s{sF}, 13")
        a(f"s_lshl_b32 s{sOffE}, s{sF}, 6")
    elif stg:
        a(f"s_lshr_b32 s{sT1}, s2, {stgsh}")
        a(f"s_mul_i32 s{sT1}, s{sT1}, {stg}")
        a(f"s_and_b32 s{sT1}, s{sT1}, 127")
        a(f"s_lshl_b32 s{sOffK}, s{sT1}, 13")
        a(f"s_lshl_b32 s{sOffE}, s{sT1}, 6")
    else:
        a(f"s_mov_b32 s{sOffK}, 0")
        a(f"s_mov_b32 s{sOffE}, 0")
    a("s_waitcnt lgkmcnt(0)")
    a(f"s_add_u32 s{SP}, s{pk}, s{sT0}")
    a(f"s_addc_u32 s{SP+1}, s{pk+1}, 0")
    a(f"s_and_b32 s{SP+1}, s{SP+1}, 0xffff")
    a(f"s_mov_b32 s{SPE}, s{pe}")
    a(f"s_and_b32 s{SPE+1}, s{pe+1}, 0xffff")

    lab = [0]
    def loads(b, Wv):
        if Wv:
            a(f"s_waitcnt vmcnt({Wv-1})")
        if mat is not None:
            ea, eo, ka, ko = VEA, "0", VKA, "0"
        else:
            ea, eo, ka, ko = VOFFE, f"s{sOffE}", VOFFK, f"s{sOffK}"
        a(f"buffer_load_dwordx4 {eb(b)}, v{ea}, s[{SPE}:{SPE+3}], {eo} offen {eflags}")
        for i in range(8):
            if Wv:
                a(f"s_waitcnt vmcnt({Wv-1})")
            a(f"buffer_load_dwordx4 {vr(KB+32*b+4*i,4)}, v{ka}, s[{SP}:{SP+3}], {ko} offen offset:{i*256} {flags}")
    def advance():
        if mat is not None:
            a(f"s_add_u32 s{sTau}, s{sTau}, 1")
            a(f"s_and_b32 s{sTau}, s{sTau}, 127")
            mat_offsets()
            return
        if xs is not None or cols is not None:
            a(f"s_add_u32 s{sTau}, s{sTau}, 1")
            a(f"s_and_b32 s{sTau}, s{sTau}, 127")
            if gp == 3:
                a(f"s_xor_b32 s{sOffE}, s{sTau}, s{sF}")
                tile_offsets(sOffE)
            else:
                a(f"s_xor_b32 s{sT1}, s{sTau}, s{sF}")
                tile_offsets(sT1)
            return
        a(f"s_add_u32 s{sOffK}, s{sOffK}, 8192")
        a(f"s_and_b32 s{sOffK}, s{sOffK}, 0xfffff")
        a(f"s_add_u32 s{sOffE}, s{sOffE}, 64")
        a(f"s_and_b32 s{sOffE}, s{sOffE}, 0x1fff")
    def rowsum(dst, src, shifts):
        first = True
        for sh in shifts:
            s_ = src if first else dst
            a(f"v_add_u32_dpp v{dst}, v{s_}, v{s_} row_shr:{sh} row_mask:0xf bank_mask:0xf bound_ctrl:0")
            a("s_nop 1")
            first = False

    def issue(b, opening=False):
        lab[0] += 1
        L = lab[0]
        if mode == "X":
            if glob and repfree:
                for ph_ in (b, (b + 3) & 3):
                    a(f"s_cmp_eq_u32 s{sRep}, {ph_ + 1}")
                    a(f"s_cbranch_scc1 L_go{L}")
            a(f"s_waitcnt vmcnt({Xb+3})")
            for lev in (3, 2, 1):
                a(f"s_cmp_ge_u32 s{sL}, {4*lev-b}")
                a(f"s_cbranch_scc1 L_go{L}")
                a(f"s_waitcnt vmcnt({Xb+lev-1})")
            a.label(f"L_go{L}")
        if fb and b == 2:
            rowsum(VT, VC, (1, 2, 4, 8))
            a(f"v_readlane_b32 s{sC}, v{VT}, 15")
            a(f"v_readlane_b32 s{sT0}, v{VT}, 31")
            a(f"s_mul_i32 s{sT1}, s{sNr}, 31")
            a(f"s_add_i32 s{sC}, s{sC}, s{sT0}")
            a(f"s_sub_i32 s{sT0}, s{sT1}, s{sC}")
            if stamp == 6:
                a(f"s_lshr_b32 m0, s{sNr}, 2")
                a(f"s_nop 0")
                a(f"v_writelane_b32 v{VHIST}, s{sT0}, m0")
            if par:
                a(f"s_sub_i32 s{sT0}, s{sT0}, s{sBias}")
            else:
                a(f"s_sub_i32 s{sT0}, s{sT0}, {bias}")
            a(f"s_mul_i32 s{sT0}, s{sT0}, {G}")
            a(f"s_ashr_i32 s{sT0}, s{sT0}, 6")
            a(f"s_sub_i32 s{sT0}, {L0}, s{sT0}")
            if nb:
                a(f"s_cmp_lt_u32 s{sNr}, {nb}")
                a(f"s_cselect_b32 s{sT1}, {dL}, 0")
                a(f"s_add_i32 s{sT0}, s{sT0}, s{sT1}")
            a(f"s_max_i32 s{sT0}, s{sT0}, 0")
            a(f"s_min_i32 s{sL}, s{sT0}, {Lmax}")
            if glob or rot:
                a(f"v_readlane_b32 s{sT0}, v{VC}, 0")
                a(f"s_nop 0")
                a(f"s_sub_i32 s{sLsum}, s{sC}, s{sT0}")
                a(f"s_mov_b32 s{sNl}, s{sNr}")
        if fb and rot:
            a(f"s_cmp_eq_u32 s{sN}, s{sRepN2}")
            a(f"s_cbranch_scc0 L_nq{L}")
            rowsum(VT, VG, (1, 2, 4))
            a(f"v_readlane_b32 s{sT0}, v{VT}, 7")
            a(f"v_readlane_b32 s{sT1}, v{VG}, s{sX}")
            a(f"s_ashr_i32 s{sT0}, s{sT0}, 3")
            a(f"s_add_i32 s{sT1}, s{sT1}, s{sOwn}")
            a(f"s_ashr_i32 s{sT1}, s{sT1}, 1")
            a(f"s_sub_i32 s{sT0}, s{sT0}, s{sT1}")
            if goff != 2:
                a(f"s_mul_i32 s{sT0}, s{sT0}, {goff}")
                a(f"s_ashr_i32 s{sT0}, s{sT0}, 1")
            if filt:
                a(f"v_readlane_b32 s{sT1}, v{VC}, 0")
                a(f"s_add_i32 s{sT0}, s{sT0}, {centre}")
                a(f"s_sub_i32 s{sT0}, s{sT0}, s{sT1}")
                a(f"s_ashr_i32 s{sT0}, s{sT0}, {filt}")
                a(f"s_add_i32 s{sT0}, s{sT0}, s{sT1}")
            a(f"s_max_i32 s{sT0}, s{sT0}, {-clampv}")
            a(f"s_min_i32 s{sT0}, s{sT0}, {clampv}")
            a(f"v_mov_b32 v{VT}, s{sT0}")
            a(f"buffer_store_dword v{VT}, v{VOW}, s[{SD}:{SD+3}], 0 offen")
            a.label(f"L_nq{L}")
            a(f"s_cmp_eq_u32 s{sN}, s{sRepN}")
            a(f"s_cbranch_scc0 L_nr{L}")
            a(f"s_sub_i32 s{sOwn}, s{sN}, s{sNl}")
            a(f"s_mul_i32 s{sOwn}, s{sOwn}, 31")
            a(f"s_add_i32 s{sOwn}, s{sOwn}, s{sLsum}")
            a(f"v_mov_b32 v{VT}, s{sOwn}")
            a(f"buffer_load_dword v{VG}, v{VGR}, s[{SD}:{SD+3}], 0 offen {grflags}")
            a(f"buffer_store_dword v{VT}, v{VGW}, s[{SD}:{SD+3}], 0 offen {gsflags}")
            a.label(f"L_nr{L}")
        if fb and glob:
            a(f"s_cmp_eq_u32 s{sRep}, {((b + 2) & 3) + 1}")
            a(f"s_cbranch_scc0 L_nq{L}")
            if mode == "F":
                a("s_waitcnt vmcnt(19)")
            rowsum(VT, VG, (1, 2, 4))
            a(f"v_readlane_b32 s{sT0}, v{VT}, 7")
            a(f"s_add_i32 s{sT1}, s{sOwn}, s{sPrev}")
            a(f"s_ashr_i32 s{sT0}, s{sT0}, 3")
            a(f"s_ashr_i32 s{sT1}, s{sT1}, 1")
            a(f"s_sub_i32 s{sT0}, s{sT0}, s{sT1}")
            a(f"v_mov_b32 v{VT}, s{sT0}")
            a(f"buffer_store_dword v{VT}, v{VOW}, s[{SD}:{SD+3}], 0 offen")
            a.label(f"L_nq{L}")
            a(f"s_cmp_eq_u32 s{sRep}, {b + 1}")
            a(f"s_cbranch_scc0 L_nr{L}")
            if RG > 1:
                a(f"s_lshr_b32 s{sT0}, s{sN}, 2")
                a(f"s_add_u32 s{sT0}, s{sT0}, s{sRph}")
                a(f"s_and_b32 s{sT0}, s{sT0}, {RG-1}")
                a(f"s_cbranch_scc1 L_nr{L}")
            a(f"s_mov_b32 s{sPrev}, s{sOwn}")
            a(f"s_sub_i32 s{sOwn}, s{sN}, s{sNl}")
            a(f"s_mul_i32 s{sOwn}, s{sOwn}, 31")
            a(f"s_add_i32 s{sOwn}, s{sOwn}, s{sLsum}")
            a(f"v_mov_b32 v{VT}, s{sOwn}")
            a(f"buffer_load_dword v{VG}, v{VGR}, s[{SD}:{SD+3}], 0 offen {grflags}")
            a(f"buffer_store_dword v{VT}, v{VGW}, s[{SD}:{SD+3}], 0 offen {gsflags}")
            a.label(f"L_nr{L}")
        if fb:
            if stag:
                a(f"s_cmp_eq_u32 s{sPh}, {b}")
                a(f"s_cbranch_scc0 L_np{L}")
                a(f"v_mov_b32 v{VPUB}, s{sN}")
                a(f"buffer_store_dword v{VPUB}, v{VCOFF}, s[{SD}:{SD+3}], 0 offen")
                a.label(f"L_np{L}")
            elif b == 0:
                a(f"v_mov_b32 v{VPUB}, s{sN}")
                a(f"buffer_store_dword v{VPUB}, v{VCOFF}, s[{SD}:{SD+3}], 0 offen")
            if b == 0:
                a(f"s_mov_b32 s{sNr}, s{sN}")
                a(f"buffer_load_dword v{VC}, v{VROFF}, s[{SD}:{SD+3}], 0 offen {rflags}")
        a(f"s_add_u32 s{sN}, s{sN}, 1")
        if mode == "F":
            if opening:
                a(f"s_cmp_eq_u32 s{sCnt}, 1")
                a(f"s_cbranch_scc1 L_fr{L}")
            if glob and repfree:
                for ph_ in (b, (b + 3) & 3):
                    a(f"s_cmp_eq_u32 s{sRep}, {ph_ + 1}")
                    a(f"s_cbranch_scc1 L_fr{L}")
            a(f"s_cmp_ge_u32 s{sL}, {8-b}")
            a(f"s_cbranch_scc1 L_hi{L}")
            a(f"s_cmp_ge_u32 s{sL}, {4-b}")
            a(f"s_cbranch_scc1 L_ka{L}")
            loads(b, Wb)
            a(f"s_branch L_dn{L}")
            a.label(f"L_ka{L}")
            loads(b, Wb + Ws)
            a(f"s_branch L_dn{L}")
            a.label(f"L_hi{L}")
            a(f"s_cmp_ge_u32 s{sL}, {12-b}")
            a(f"s_cbranch_scc1 L_kb{L}")
            loads(b, Wb + 2 * Ws)
            a(f"s_branch L_dn{L}")
            a.label(f"L_kb{L}")
            loads(b, Wb + 3 * Ws)
            if (glob and repfree) or opening:
                a(f"s_branch L_dn{L}")
                a.label(f"L_fr{L}")
                loads(b, 0)
            a.label(f"L_dn{L}")
        else:
            loads(b, 0)
        advance()

    def consume(b, isV):
        def perms(j):
            t = TMP + 4 * (j & 1)
            p = j >> 1
            sel = sSelHi if (j & 1) else sSelLo
            for vv in range(4):
                r0 = KB + 32 * b + 4 * (2 * vv) + p
                r1 = KB + 32 * b + 4 * (2 * vv + 1) + p
                a(f"v_perm_b32 v{t+vv}, v{r1}, v{r0}, s{sel}")
        def mf(j):
            t = TMP + 4 * (j & 1)
            if isV:
                a(f"v_mfma_f32_16x16x32_bf16 {vr(ACC+4*j,4)}, {eb(b)}, {vr(t,4)}, {vr(ACC+4*j,4)}")
            else:
                a(f"v_mfma_f32_16x16x32_bf16 {vr(ACC+4*j,4)}, {vr(t,4)}, {eb(b)}, {vr(ACC+4*j,4)}")
        perms(0)
        for j in range(8):
            if j + 1 < 8:
                perms(j + 1)
            else:
                a("s_nop 1")
            mf(j)

    for b in range(D):
        if X0 >= 0 and b > 0:
            a(f"s_waitcnt vmcnt({X0})")
        loads(b, W0)
        advance()
        if b == 0:
            a(f"v_lshlrev_b32 v{VOFFQ}, 8, v4")
            a(f"v_lshl_add_u32 v{VOFFQ}, v5, 6, v{VOFFQ}")
            for (S, p) in ((SK, pk), (SV, pv)):
                a(f"s_add_u32 s{S}, s{p}, s{sT0}")
                a(f"s_addc_u32 s{S+1}, s{p+1}, 0")
                a(f"s_and_b32 s{S+1}, s{S+1}, 0xffff")
                a(f"s_mov_b32 s{S+2}, 0x100000")
                a(f"s_mov_b32 s{S+3}, 0x20000")
            a(f"s_mov_b32 s{SF}, s{pf}")
            a(f"s_and_b32 s{SF+1}, s{pf+1}, 0xffff")
            a(f"s_mov_b32 s{SF+2}, 0x20000")
            a(f"s_mov_b32 s{SF+3}, 0x20000")
            a(f"s_lshl_b32 s{sT0}, s2, 12")
            for (S, p) in ((SQ, pq), (SO, po)):
                a(f"s_add_u32 s{S}, s{p}, s{sT0}")
                a(f"s_addc_u32 s{S+1}, s{p+1}, 0")
                a(f"s_and_b32 s{S+1}, s{S+1}, 0xffff")
                a(f"s_mov_b32 s{S+2}, 0x1000")
                a(f"s_mov_b32 s{S+3}, 0x20000")
            for t in range(4):
                a(f"buffer_load_dwordx4 {vr(QF+4*t,4)}, v{VOFFQ}, s[{SQ}:{SQ+3}], 0 offen offset:{t*16}")
            if vtouch:
                a(f"buffer_load_dword v{VT}, off, s[{SV}:{SV+3}], 0 nt")
                a(f"buffer_load_dword v{VT}, off, s[{SF}:{SF+3}], 0")
    if stamp == 3:
        a(f"v_mov_b32 v{VHIST}, 0")
        a("s_memrealtime s[42:43]")
        a("s_waitcnt lgkmcnt(0)")
        a(f"v_writelane_b32 v{VHIST}, s42, 0")
        for n_, cnt in enumerate((31, 27, 18, 9, 0)):
            a(f"s_waitcnt vmcnt({cnt})")
            a("s_memrealtime s[42:43]")
            a("s_waitcnt lgkmcnt(0)")
            a(f"v_writelane_b32 v{VHIST}, s42, {n_ + 1}")
    a(f"s_mov_b32 s{sSelLo}, 0x05040100")
    a(f"s_mov_b32 s{sSelHi}, 0x07060302")
    a(f"s_mov_b32 s{sN}, 0")
    a(f"s_mov_b32 s{sNr}, 0")
    a(f"s_mov_b32 s{sL}, {min(L0 + (dL if nb else 0), Lmax)}")
    if fb:
        a(f"s_mov_b32 s{SD}, s{pd}")
        a(f"s_and_b32 s{SD+1}, s{pd+1}, 0xffff")
        a(f"s_mov_b32 s{SD+2}, 256")
        a(f"s_mov_b32 s{SD+3}, 0x20000")
        a(f"s_lshr_b32 s{sT0}, s2, 3")
        a(f"s_and_b32 s{sPh}, s{sT0}, 3")
        a(f"s_sub_u32 s{sT1}, s{sT0}, 1")
        a(f"s_lshl_b32 s{sT0}, s{sT0}, 2")
        a(f"s_cmp_lt_u32 s{sT1}, 31")
        a(f"s_cselect_b32 s{sT0}, s{sT0}, 0x40000000")
        a(f"v_mov_b32 v{VCOFF}, 0x40000000")
        a(f"v_mov_b32 v{VC}, s{sT0}")
        a(f"v_cmp_eq_u32 vcc, 0, v0")
        a(f"s_nop 0")
        a(f"v_cndmask_b32 v{VCOFF}, v{VCOFF}, v{VC}, vcc")
        a(f"v_lshlrev_b32 v{VROFF}, 2, v0")
        a(f"v_mov_b32 v{VC}, 0x40000000")
        a(f"v_cmp_gt_u32 vcc, 32, v0")
        a(f"s_nop 0")
        a(f"v_cndmask_b32 v{VROFF}, v{VC}, v{VROFF}, vcc")
        if par:
            a(f"s_getreg_b32 s{sT0}, hwreg(HW_REG_XCC_ID, 0, 1)")
            a(f"s_mul_i32 s{sT0}, s{sT0}, {2 * par}")
            a(f"s_sub_i32 s{sBias}, {bias + par}, s{sT0}")
        if rot:
            a(f"s_getreg_b32 s{sX}, hwreg(HW_REG_XCC_ID, 0, 3)")
            a(f"s_lshr_b32 s{sT0}, s2, 3")
            a(f"s_sub_u32 s{sT1}, s{sT0}, 1")
            a(f"s_lshl_b32 s{sT0}, s{sT0}, 3")
            a(f"s_add_u32 s{sT0}, s{sT0}, s{sX}")
            a(f"s_cmp_lt_u32 s{sT1}, {rotlast}")
            a(f"s_cselect_b32 s{sRepN}, s{sT0}, 0x7fff0000")
            if rotstep > 1:
                a(f"s_lshr_b32 s{sT1}, s2, 3")
                a(f"s_and_b32 s{sT1}, s{sT1}, {rotstep-1}")
                a(f"s_cselect_b32 s{sRepN}, 0x7fff0000, s{sRepN}")
            a(f"s_add_u32 s{sRepN2}, s{sRepN}, 2")
            a(f"s_mov_b32 s{sOwn}, 0")
            a(f"s_mov_b32 s{sLsum}, 0")
            a(f"s_mov_b32 s{sNl}, 0")
            a(f"s_lshl_b32 s{sT0}, s{sX}, 2")
            a(f"s_add_u32 s{sT0}, s{sT0}, 128")
            a(f"v_mov_b32 v{VG}, s{sT0}")
            a(f"v_cmp_eq_u32 vcc, 0, v0")
            a(f"s_nop 0")
            a(f"v_cndmask_b32 v{VGW}, v{VC}, v{VG}, vcc")
            a(f"v_mov_b32 v{VG}, 0")
            a(f"s_nop 0")
            a(f"v_cndmask_b32 v{VOW}, v{VC}, v{VG}, vcc")
            a(f"v_lshlrev_b32 v{VGR}, 2, v0")
            a(f"v_add_u32 v{VGR}, 128, v{VGR}")
            a(f"v_cmp_gt_u32 vcc, 8, v0")
            a(f"s_nop 0")
            a(f"v_cndmask_b32 v{VGR}, v{VC}, v{VGR}, vcc")
        if glob:
            a(f"s_and_b32 s{sT0}, s2, 3")
            a(f"s_add_u32 s{sT0}, s{sT0}, 1")
            a(f"s_cmp_lt_u32 s2, 8")
            a(f"s_cselect_b32 s{sRep}, s{sT0}, 0")
            a(f"s_mov_b32 s{sLsum}, 0")
            a(f"s_mov_b32 s{sNl}, 0")
            a(f"s_lshr_b32 s{sRph}, s2, 2")
            a(f"s_mov_b32 s{sOwn}, 0")
            a(f"s_mov_b32 s{sPrev}, 0")
            a(f"s_and_b32 s{sT0}, s2, 7")
            a(f"s_lshl_b32 s{sT0}, s{sT0}, 2")
            a(f"s_add_u32 s{sT0}, s{sT0}, 128")
            a(f"v_mov_b32 v{VG}, s{sT0}")
            a(f"v_cmp_eq_u32 vcc, 0, v0")
            a(f"s_nop 0")
            a(f"v_cndmask_b32 v{VGW}, v{VC}, v{VG}, vcc")
            a(f"v_mov_b32 v{VG}, 0")
            a(f"s_nop 0")
            a(f"v_cndmask_b32 v{VOW}, v{VC}, v{VG}, vcc")
            a(f"v_lshlrev_b32 v{VGR}, 2, v0")
            a(f"v_add_u32 v{VGR}, 128, v{VGR}")
            a(f"v_cmp_gt_u32 vcc, 8, v0")
            a(f"s_nop 0")
            a(f"v_cndmask_b32 v{VGR}, v{VC}, v{VGR}, vcc")
        a(f"v_mov_b32 v{VC}, 0")
    for i in range(32):
        a(f"v_mov_b32 v{ACC+i}, 0")
    if stamp in (2, 6):
        a(f"v_mov_b32 v{VHIST}, 0")
    for ph in range(2):
        last = ph == 1
        a(f"s_mov_b32 s{sCnt}, {steps // D}")
        a.label(f"L_loop{ph}")
        if last and tail:
            if endpub and endpos == 1:
                a(f"s_cmp_eq_u32 s{sCnt}, 1")
                a(f"s_cbranch_scc0 L_nosw{ph}")
                a(f"v_mov_b32 v{VPUB}, {endpub}")
                a(f"buffer_store_dword v{VPUB}, v{VCOFF}, s[{SD}:{SD+3}], 0 offen")
                a.label(f"L_nosw{ph}")
        else:
            a(f"s_cmp_eq_u32 s{sCnt}, 1")
            a(f"s_cbranch_scc0 L_nosw{ph}")
            if last:
                a(f"s_mov_b32 s{SP+2}, 0")
                a(f"s_mov_b32 s{SPE+2}, 0")
            else:
                for i in range(3):
                    a(f"s_mov_b32 s{SP+i}, s{SV+i}")
                    a(f"s_mov_b32 s{SPE+i}, s{SF+i}")
            a.label(f"L_nosw{ph}")
        for b in range(D):
            if last and tail and b > 0:
                a(f"s_cmp_eq_u32 s{sCnt}, 1")
                a(f"s_cbranch_scc0 L_tw{b}")
                a(f"s_waitcnt vmcnt({(D-1-b)*9})")
                a.label(f"L_tw{b}")
            a(f"s_waitcnt vmcnt({(D-1)*9})")
            if stamp == 2 and b == 0:
                a("s_memrealtime s[42:43]")
            consume(b, ph == 1)
            if stamp == 2 and b == 0:
                a("s_waitcnt lgkmcnt(0)")
                a(f"s_lshr_b32 m0, s{sN}, 2")
                a("s_nop 0")
                a(f"v_writelane_b32 v{VHIST}, s42, m0")
            if last and tail:
                a(f"s_cmp_eq_u32 s{sCnt}, 1")
                a(f"s_cbranch_scc1 L_ts{b}")
            issue(b, opening=(ph == 0 and b >= D - openk))
            if last and tail:
                a.label(f"L_ts{b}")
        a(f"s_sub_u32 s{sCnt}, s{sCnt}, 1")
        a(f"s_cmp_lg_u32 s{sCnt}, 0")
        a(f"s_cbranch_scc1 L_loop{ph}")
        if ph == 0:
            a("s_nop 7")
            for t in range(4):
                tt = TMP + 4 * (t & 1)
                for vv in range(4):
                    a(f"v_cvt_pk_bf16_f32 v{tt+vv}, v{ACC+4*(2*vv)+t}, v{ACC+4*(2*vv+1)+t}")
                a("s_nop 1")
                c = "0" if t == 0 else vr(SC, 4)
                a(f"v_mfma_f32_16x16x32_bf16 {vr(SC,4)}, {vr(tt,4)}, {vr(QF+4*t,4)}, {c}")
            for i in range(32):
                a(f"v_mov_b32 v{ACC+i}, 0")
            a(f"v_cvt_pk_bf16_f32 v4, v{SC}, v{SC+1}")
            a(f"v_cvt_pk_bf16_f32 v5, v{SC+2}, v{SC+3}")
            a(f"v_lshlrev_b32 v6, 16, v4")
            a(f"v_and_b32 v7, 0xffff0000, v4")
            a(f"v_lshlrev_b32 v8, 16, v5")
            a(f"v_and_b32 v9, 0xffff0000, v5")
            a(f"s_mov_b32 s{sT0}, 0x3db504f3")
            for i in range(4):
                a(f"v_mul_f32 v{6+i}, s{sT0}, v{6+i}")
            a(f"v_cvt_pk_bf16_f32 v4, v6, v7")
            a(f"v_cvt_pk_bf16_f32 v5, v8, v9")
            a(f"v_lshlrev_b32 v6, 16, v4")
            a(f"v_and_b32 v7, 0xffff0000, v4")
            a(f"v_lshlrev_b32 v8, 16, v5")
            a(f"v_and_b32 v9, 0xffff0000, v5")
            a("v_max_f32 v4, v6, v7")
            a("v_max3_f32 v4, v4, v8, v9")
            def xreduce(op):
                a("v_mov_b32 v5, v4")
                a("s_nop 1")
                a("v_permlane32_swap_b32 v4, v5")
                a("s_nop 1")
                a(f"{op} v4, v4, v5")
                a("v_mov_b32 v5, v4")
                a("s_nop 1")
                a("v_permlane16_swap_b32 v4, v5")
                a("s_nop 1")
                a(f"{op} v4, v4, v5")
            xreduce("v_max_f32")
            a(f"s_mov_b32 s{sT0}, 0x3fb8aa3b")
            for i in range(4):
                a(f"v_sub_f32 v{6+i}, v{6+i}, v4")
            for i in range(4):
                a(f"v_mul_f32 v{6+i}, s{sT0}, v{6+i}")
            for i in range(4):
                a(f"v_exp_f32 v{6+i}, v{6+i}")
            a("s_nop 0")
            a("v_add_f32 v4, v6, v7")
            a("v_add_f32 v5, v8, v9")
            a("v_add_f32 v4, v4, v5")
            xreduce("v_add_f32")
            a("v_rcp_f32 v4, v4")
            a("s_nop 0")
            for i in range(4):
                a(f"v_mul_f32 v{6+i}, v4, v{6+i}")
            a(f"v_cvt_pk_bf16_f32 v{PP}, v6, v7")
            a(f"v_cvt_pk_bf16_f32 v{PP+1}, v8, v9")
    if fb and endpub and not (tail and endpos == 1):
        a(f"v_mov_b32 v{VPUB}, {endpub}")
        a(f"buffer_store_dword v{VPUB}, v{VCOFF}, s[{SD}:{SD+3}], 0 offen")
    a("s_nop 7")
    O = KB
    if not tail:
        a("s_waitcnt vmcnt(0)")
    for j in range(8):
        tt = TMP + 2 * (j & 3)
        a(f"v_cvt_pk_bf16_f32 v{tt}, v{ACC+4*j}, v{ACC+4*j+1}")
        a(f"v_cvt_pk_bf16_f32 v{tt+1}, v{ACC+4*j+2}, v{ACC+4*j+3}")
        a("s_nop 1")
        a(f"v_mfma_f32_16x16x16_bf16 {vr(O+4*j,4)}, {vr(PP,2)}, {vr(tt,2)}, 0")
    a("s_nop 7")
    a("v_lshrrev_b32 v5, 4, v0")
    a("v_and_b32 v4, 15, v0")
    a("v_lshlrev_b32 v3, 10, v5")
    a("v_lshl_add_u32 v3, v4, 4, v3")
    for t in range(4):
        for vv in range(4):
            a(f"v_cvt_pk_bf16_f32 v{ACC+4*t+vv}, v{O+4*(2*vv)+t}, v{O+4*(2*vv+1)+t}")
        a(f"buffer_store_dwordx4 {vr(ACC+4*t,4)}, v3, s[{SO}:{SO+3}], 0 offen offset:{t*256} {oflags}")
    if stamp:
        a(f"s_mov_b32 s68, s56")
        a(f"s_and_b32 s69, s57, 0xffff")
        a(f"s_mov_b32 s70, 0x10000000")
        a(f"s_mov_b32 s71, 0x20000")
        a("s_waitcnt vmcnt(0)")
        a("s_memrealtime s[42:43]")
        a(f"s_getreg_b32 s72, hwreg(HW_REG_XCC_ID)")
        a(f"s_getreg_b32 s73, hwreg(HW_REG_HW_ID)")
        a("s_waitcnt lgkmcnt(0)")
        a(f"v_mov_b32 v4, s{sStart}")
        a(f"v_mov_b32 v5, s{sStart+1}")
        a(f"v_mov_b32 v6, s42")
        a(f"v_mov_b32 v7, s43")
        a(f"v_mov_b32 v8, s72")
        a(f"v_mov_b32 v9, s73")
        a(f"v_mov_b32 v10, 0")
        a(f"v_mov_b32 v11, 0")
        a(f"s_lshl_b32 s{sT1}, s2, 5")
        a(f"v_mov_b32 v3, 0")
        a("v_cmp_eq_u32 vcc, 0, v0")
        a("s_and_saveexec_b64 s[74:75], vcc")
        a(f"buffer_store_dwordx4 v[4:7], v3, s[68:71], s{sT1} offen")
        a(f"buffer_store_dwordx4 v[8:11], v3, s[68:71], s{sT1} offen offset:16")
        a("s_mov_b64 exec, s[74:75]")
        if stamp in (2, 3, 6):
            a(f"s_lshl_b32 s{sT1}, s2, 8")
            a(f"s_add_u32 s{sT1}, s{sT1}, 0x200000")
            a("v_lshlrev_b32 v3, 2, v0")
            a(f"buffer_store_dword v{VHIST}, v3, s[68:71], s{sT1} offen")
    if helper:
        a("s_endpgm")
        a.label("L_helper")
        a("s_load_dwordx2 s[58:59], s[0:1], 48")
        a(f"s_getreg_b32 s{sT0}, hwreg(HW_REG_XCC_ID, 0, 3)")
        a(f"s_lshl_b32 s{sT0}, s{sT0}, 2")
        a(f"s_add_u32 s{sT0}, s{sT0}, 128")
        a(f"v_mov_b32 v{VT}, 0x40000000")
        a(f"v_lshlrev_b32 v{VROFF}, 2, v0")
        a(f"v_add_u32 v{VGR}, 128, v{VROFF}")
        a(f"v_cmp_gt_u32 vcc, 32, v0")
        a(f"s_nop 0")
        a(f"v_cndmask_b32 v{VROFF}, v{VT}, v{VROFF}, vcc")
        a(f"v_cmp_gt_u32 vcc, 8, v0")
        a(f"s_nop 0")
        a(f"v_cndmask_b32 v{VGR}, v{VT}, v{VGR}, vcc")
        a(f"v_mov_b32 v{VG}, s{sT0}")
        a(f"v_mov_b32 v{VC}, 0")
        a(f"v_cmp_eq_u32 vcc, 0, v0")
        a(f"s_nop 0")
        a(f"v_cndmask_b32 v{VGW}, v{VT}, v{VG}, vcc")
        a(f"v_cndmask_b32 v{VOW}, v{VT}, v{VC}, vcc")
        a(f"s_mov_b32 s{sOwn}, 0")
        a(f"s_mov_b32 s{sCnt}, 0")
        a("s_waitcnt lgkmcnt(0)")
        a(f"s_mov_b32 s{SD}, s{pd}")
        a(f"s_and_b32 s{SD+1}, s{pd+1}, 0xffff")
        a(f"s_mov_b32 s{SD+2}, 256")
        a(f"s_mov_b32 s{SD+3}, 0x20000")
        a.label("L_hloop")
        a(f"buffer_load_dword v{VC}, v{VROFF}, s[{SD}:{SD+3}], 0 offen {rflags}")
        a(f"buffer_load_dword v{VG}, v{VGR}, s[{SD}:{SD+3}], 0 offen {grflags}")
        a("s_waitcnt vmcnt(0)")
        rowsum(VT, VC, (1, 2, 4, 8))
        a(f"v_readlane_b32 s{sC}, v{VT}, 15")
        a(f"v_readlane_b32 s{sT0}, v{VT}, 31")
        a(f"v_readlane_b32 s{sT1}, v{VC}, 0")
        rowsum(VT, VG, (1, 2, 4))
        a(f"s_add_i32 s{sC}, s{sC}, s{sT0}")
        a(f"v_readlane_b32 s{sT0}, v{VT}, 7")
        a(f"s_mov_b32 s{sPrev}, s{sOwn}")
        a(f"s_sub_i32 s{sOwn}, s{sC}, s{sT1}")
        a(f"s_add_i32 s{sT1}, s{sOwn}, s{sPrev}")
        a(f"s_ashr_i32 s{sT0}, s{sT0}, 3")
        a(f"s_ashr_i32 s{sT1}, s{sT1}, 1")
        a(f"s_sub_i32 s{sT0}, s{sT0}, s{sT1}")
        a(f"s_max_i32 s{sT0}, s{sT0}, {-clampv}")
        a(f"s_min_i32 s{sT0}, s{sT0}, {clampv}")
        a(f"v_mov_b32 v{VT}, s{sOwn}")
        a(f"v_mov_b32 v{VPUB}, s{sT0}")
        a(f"buffer_store_dword v{VT}, v{VGW}, s[{SD}:{SD+3}], 0 offen {gsflags}")
        a(f"buffer_store_dword v{VPUB}, v{VOW}, s[{SD}:{SD+3}], 0 offen")
        a(f"s_add_u32 s{sCnt}, s{sCnt}, 1")
        a(f"s_cmp_ge_i32 s{sOwn}, {hthr}")
        a(f"s_cbranch_scc1 L_hdone")
        a(f"s_cmp_lt_u32 s{sCnt}, {hmax}")
        a(f"s_cbranch_scc1 L_hloop")
        a.label("L_hdone")
        if stamp:
            a(f"s_getreg_b32 s{sT0}, hwreg(HW_REG_XCC_ID, 0, 3)")
            a(f"s_lshl_b32 s{sT0}, s{sT0}, 2")
            a(f"s_add_u32 s{sT0}, s{sT0}, 192")
            a(f"v_mov_b32 v{VT}, s{sCnt}")
            a(f"buffer_store_dword v{VT}, v{VOW}, s[{SD}:{SD+3}], s{sT0} offen sc1")
    a.label("L_end")
    a("s_endpgm")
    return wrap(a.text(), ngrid, 64, lds, nv, accum), dict(nwaves=512, nv=nv)

if __name__ == "__main__":
    import json
    kw = json.loads(sys.argv[1]) if len(sys.argv) > 1 else {}
    s, info = gen(**kw)
    print(s)
```
